```python
import torch

def _softmax(x, axis=-1):
    return torch.softmax(x, dim=axis)
def _gelu(x):
    return torch.nn.functional.gelu(x, approximate="tanh")
def _silu(x):
    return torch.nn.functional.silu(x)
def _sigmoid(x):
    return torch.sigmoid(x)
def _layernorm(x, axis=-1, eps=1e-5):
    m = x.mean(dim=axis, keepdim=True)
    v = x.var(dim=axis, keepdim=True, unbiased=False)
    return (x - m) / torch.sqrt(v + eps)
def _scatter_add(tgt, idx, src, axis=0):
    return tgt.clone().index_add_(axis, idx, src)
def _segment_sum(src, seg, n):
    out = torch.zeros((n,) + src.shape[1:], dtype=src.dtype)
    return out.index_add_(0, seg, src)
def _pad(x, pw):
    flat = tuple(v for pair in reversed(pw) for v in pair)
    return torch.nn.functional.pad(x, flat)

kernel_name = 'gated_mix__softmax_full_mha__ssm_conv_s4__prompt'

def setup_inputs():

    _w = (lambda a: (lambda t: t.to(torch.bfloat16) if t.is_floating_point() else t)(torch.as_tensor(a)))
    def _A_setup():
        B, S, D = 1, 2048, 512
        return {
            "x": _w((lambda *s: torch.randn(*s, dtype=torch.bfloat16) * 0.05)(B, S, D)),
            "wqkv": _w((lambda *s: torch.randn(*s, dtype=torch.bfloat16) * 0.8)(D, 3 * D)),
            "wo": _w((lambda *s: torch.randn(*s, dtype=torch.bfloat16) * 0.05)(D, D)),
        }
    _A_in = _A_setup()

    def _B_setup():
        B, L, D, N = 1, 2048, 512, 128
        A_re = -(lambda _x: torch.exp(torch.as_tensor(_x)))((lambda *s: torch.randn(*s, dtype=torch.bfloat16) * 6.4)(D, N))
        A_im = torch.pi * (lambda *s: torch.randn(*s, dtype=torch.bfloat16) * 0.1)(D, N)
        B_re = (lambda *s: torch.randn(*s, dtype=torch.bfloat16) * 0.2)(D, N)
        B_im = (lambda *s: torch.randn(*s, dtype=torch.bfloat16) * 0.2)(D, N)
        C_re = (lambda *s: torch.randn(*s, dtype=torch.bfloat16) * 0.2)(D, N)
        C_im = (lambda *s: torch.randn(*s, dtype=torch.bfloat16) * 0.2)(D, N)
        log_dt = (lambda *s: torch.randn(*s, dtype=torch.bfloat16) * 0.1)(D) * 0.5 - 4.0
        Dskip = (lambda *s: torch.randn(*s, dtype=torch.bfloat16) * 0.1)(D)
        return {
            "u": _w((lambda *s: torch.randn(*s, dtype=torch.bfloat16) * 0.05)(B, L, D)),
            "A_re": _w(A_re),
            "A_im": _w(A_im),
            "B_re": _w(B_re),
            "B_im": _w(B_im),
            "C_re": _w(C_re),
            "C_im": _w(C_im),
            "log_dt": _w(log_dt),
            "Dskip": _w(Dskip),
        }
    _B_in = _B_setup()

    return {
        "A_x": _A_in["x"],
        "A_wqkv": _A_in["wqkv"],
        "A_wo": _A_in["wo"],
        "B_u": _B_in["u"],
        "B_A_re": _B_in["A_re"],
        "B_A_im": _B_in["A_im"],
        "B_B_re": _B_in["B_re"],
        "B_B_im": _B_in["B_im"],
        "B_C_re": _B_in["C_re"],
        "B_C_im": _B_in["C_im"],
        "B_log_dt": _B_in["log_dt"],
        "B_Dskip": _B_in["Dskip"],
        "gate_w": _w((lambda *s: torch.randn(*s, dtype=torch.bfloat16) * 0.05)(512) * 16.0),
    }

def reference(A_x, A_wqkv, A_wo, B_u, B_A_re, B_A_im, B_B_re, B_B_im, B_C_re, B_C_im, B_log_dt, B_Dskip, gate_w):
    def _A_ref(x, wqkv, wo):
        B, S, D = x.shape
        H = 32; Dh = D // H
        qkv = (lambda x, *d: x.permute(*d))((x @ wqkv).reshape(B, S, 3, H, Dh), 2, 0, 3, 1, 4)
        q, k, v = qkv[0], qkv[1], qkv[2]
        scale = Dh ** -0.5
        scores = torch.einsum("bhqd,bhkd->bhqk", q, k) * scale
        p = _softmax(scores, axis=-1)
        o = torch.einsum("bhqk,bhkd->bhqd", p, v)
        return (lambda x, *d: x.permute(*d))(o, 0, 2, 1, 3).reshape(B, S, D) @ wo

    def _B_ref(u, A_re, A_im, B_re, B_im, C_re, C_im, log_dt, Dskip):
        Bsz, L, D = u.shape
        dt = torch.exp(log_dt)[:, None]
        A = A_re + 1j * A_im
        Bc = B_re + 1j * B_im
        Cc = C_re + 1j * C_im
        logdA = dt * A
        dB = dt * Bc
        l = (lambda x, dt: x.to(dt))(torch.arange(L), A_re.dtype)
        P = torch.exp(logdA[:, :, None] * l[None, None, :])
        K = torch.einsum("dn,dnl,dn->dl", Cc, P, dB).real
        L2 = 2 * L
        Kp = _pad(K, ((0, 0), (0, L)))
        up = (lambda x, *d: x.permute(*d))(u, 0, 2, 1)
        up = _pad(up, ((0, 0), (0, 0), (0, L)))
        Kf = (lambda x, axes=(-2,-1): torch.fft.rfft2(x.float(), dim=axes))(Kp[:, None, :], axes=(-2, -1))
        Uf = (lambda x, axes=(-2,-1): torch.fft.rfft2(x.float(), dim=axes))(up[:, :, None, :], axes=(-2, -1))
        Yf = Uf * Kf[None, :, :, :]
        y = (lambda x, s, axes=(-2,-1): torch.fft.irfft2(x, s=s, dim=axes).to(torch.bfloat16))(Yf, (1, L2), axes=(-2, -1))[:, :, 0, :L]
        y = (lambda x, *d: x.permute(*d))(y, 0, 2, 1) + u * Dskip[None, None, :]
        return y

    x = A_x
    g = _sigmoid((x * gate_w).sum(-1, keepdims=True))
    a = _A_ref(x, A_wqkv, A_wo)
    b = _B_ref(x, B_A_re, B_A_im, B_B_re, B_B_im, B_C_re, B_C_im, B_log_dt, B_Dskip)
    return g * a + (1 - g) * b
```

```python
import re

TRANS = ("v_exp_f32", "v_log_f32", "v_rcp_f32", "v_rsq_f32", "v_sqrt_f32", "v_sin_f32", "v_cos_f32")

def regs_of(tok):
    tok = tok.strip()
    tok = tok.lstrip("-")
    m = re.fullmatch(r"(?:abs\()?\|?([vsa])(\d+)\|?\)?", tok)
    if m:
        return {(m.group(1), int(m.group(2)))}
    m = re.fullmatch(r"([vsa])\[(\d+):(\d+)\]", tok)
    if m:
        return {(m.group(1), i) for i in range(int(m.group(2)), int(m.group(3)) + 1)}
    if tok in ("vcc", "vcc_lo", "vcc_hi"):
        return {("vcc", 0)}
    if tok in ("exec", "exec_lo", "exec_hi"):
        return {("exec", 0)}
    if tok == "m0":
        return {("m0", 0)}
    return set()

class Ins:
    def __init__(self, text):
        self.text = text
        t = text.split(";")[0].strip()
        self.label = t.endswith(":")
        self.directive = t.startswith(".")
        self.op = t.split()[0] if t else ""
        rest = t[len(self.op):].strip()
        ops, depth, cur = [], 0, ""
        for ch in rest:
            if ch == "[": depth += 1
            if ch == "]": depth -= 1
            if ch == "," and depth == 0:
                ops.append(cur.strip()); cur = ""
            else:
                cur += ch
        if cur.strip(): ops.append(cur.strip())
        self.mods = ""
        if ops:
            parts = ops[-1].split(None, 1)
            ops[-1] = parts[0]
            self.mods = parts[1] if len(parts) > 1 else ""
        self.ops = ops
        op = self.op
        self.kind = "other"
        self.w, self.r = set(), set()
        self.passes = 0
        self.srcC = set(); self.srcAB = set()
        R = [regs_of(o) for o in ops]
        if self.label or self.directive or not op:
            self.kind = "meta"
        elif op.startswith("v_mfma") or op.startswith("v_smfmac"):
            self.kind = "mfma"
            self.passes = 8 if "32x32" in op else 4
            self.w = R[0]
            if op.startswith("v_smfmac"):
                self.srcAB = R[1] | R[2] | R[3]; self.srcC = R[0]
            else:
                self.srcAB = R[1] | R[2]; self.srcC = R[3]
            self.r = self.srcAB | self.srcC
        elif op.startswith("v_"):
            self.kind = "valu"
            self.trans = any(op.startswith(x) for x in TRANS)
            self.dpp = "row_" in self.mods or "quad_perm" in self.mods or op.endswith("_dpp")
            self.perml = op.startswith("v_permlane")
            self.rdlane = op.startswith("v_readfirstlane") or op.startswith("v_readlane")
            if self.perml:
                self.w = R[0] | R[1]; self.r = R[0] | R[1]
            elif op.startswith("v_add_co") or op.startswith("v_addc_co") or op.startswith("v_sub_co"):
                self.w = R[0] | R[1]; self.r = set().union(*R[2:])
            else:
                self.w = R[0]; self.r = set().union(*R[1:]) if len(R) > 1 else set()
                if op.startswith("v_fmac") or op.startswith("v_dot2c") or self.dpp or op.startswith("v_writelane"):
                    self.r |= R[0]
                if op.startswith("v_cndmask") and len(ops) == 3:
                    self.r |= {("vcc", 0)}
        elif op.startswith("ds_"):
            self.kind = "ds"
            if op.startswith("ds_read") or op.startswith("ds_bpermute") or op.startswith("ds_swizzle") or "_rtn" in op:
                self.w = R[0]; self.r = set().union(*R[1:])
            else:
                self.r = set().union(*R)
        elif op.startswith("buffer_") or op.startswith("global_"):
            self.kind = "vmem"
            self.ldsdma = (" lds" in (" " + self.mods)) or "_lds_" in op
            self.store = "store" in op or "atomic" in op
            self.wide = self.store and ("x3" in op or "x4" in op)
            if op in ("buffer_wbl2", "buffer_inv"):
                pass
            elif self.ldsdma:
                self.r = set().union(*R) | {("m0", 0)}
            elif self.store:
                self.r = set().union(*R)
                self.data = R[0] if op.startswith("buffer_") else R[1]
                if "atomic" in op and "sc0" in self.mods:
                    self.w = R[0]
            else:
                self.w = R[0]; self.r = set().union(*R[1:])
                if "d16" in op: self.r |= R[0]
        elif op.startswith("s_"):
            self.kind = "salu"
            if op.startswith("s_cmp") or op.startswith("s_cbranch") or op in ("s_branch", "s_barrier", "s_waitcnt", "s_nop", "s_endpgm", "s_setprio", "s_sleep"):
                self.r = set().union(*R) if R else set()
            else:
                self.w = R[0] if R else set(); self.r = set().union(*R[1:]) if len(R) > 1 else set()
                if "saveexec" in op: self.w |= {("exec", 0)}
        self.states = 0 if self.kind == "meta" else 1
        if op == "s_nop":
            self.states = int(ops[0], 0) + 1

def isv(s): return {x for x in s if x[0] in ("v", "a")}
def iss(s): return {x for x in s if x[0] in ("s", "vcc")}

def need(p, c):
    n = 0
    if p.kind == "valu":
        wv = isv(p.w); ws = iss(p.w)
        if c.kind == "mfma" and wv & c.r: n = max(n, 2)
        if c.kind == "valu":
            if p.trans and not c.trans and wv & c.r: n = max(n, 1)
            if c.rdlane and wv & c.r: n = max(n, 1)
            if (c.dpp or c.perml) and wv & c.r: n = max(n, 2)
            if ws & c.r: n = max(n, 4 if c.rdlane else 2)
        if p.trans and c.kind in ("ds", "vmem") and wv & c.r: n = max(n, 1)
        if c.kind == "vmem" and ws & c.r: n = max(n, 5)
        if c.kind == "salu" and ws & c.r: n = max(n, 2)
    if p.kind == "mfma":
        big = {4: 8, 8: 12}[p.passes]
        if c.kind == "mfma":
            if p.w & c.srcAB: n = max(n, big)
            if p.w & c.srcC and not (p.w == c.srcC and p.passes == c.passes): n = max(n, big - 2)
        elif c.kind in ("valu", "ds", "vmem"):
            if p.w & (c.r | c.w): n = max(n, big)
            if c.kind == "valu" and p.srcC & c.w: n = max(n, {4: 3, 8: 7}[p.passes])
    if p.kind == "salu" and ("m0", 0) in p.w and c.kind == "vmem" and getattr(c, "ldsdma", False): n = max(n, 1)
    if p.kind == "vmem" and getattr(p, "wide", False):
        if p.data & c.w: n = max(n, 2 if c.kind in ("valu", "mfma") else 1)
    return n

class Asm:
    def __init__(self):
        self.ins = []
    def __call__(self, text):
        for line in text.strip("\n").split("\n"):
            line = line.strip()
            if not line or line.startswith(";"):
                continue
            self.add(Ins(line))
    def add(self, c):
        if c.kind != "meta":
            dist = 0; pad = 0
            for p in reversed(self.ins):
                if p.op in ("s_branch", "s_endpgm"): break
                if p.kind == "meta": continue
                n = need(p, c)
                if n > dist: pad = max(pad, n - dist)
                dist += p.states
                if dist >= 13: break
            while pad > 0:
                k = min(pad, 16)
                self.ins.append(Ins(f"s_nop {k-1}")); pad -= k
        self.ins.append(c)
    def check_branches(self):
        labels = {i.text.split(":")[0].strip(): k for k, i in enumerate(self.ins) if i.label}
        bad = []
        for k, b in enumerate(self.ins):
            if b.op.startswith("s_cbranch") or b.op == "s_branch":
                tgt = labels.get(b.ops[0])
                if tgt is None: continue
                prods = []; d = 0
                for p in reversed(self.ins[:k+1]):
                    if p.kind == "meta": continue
                    if p is not b and p.op in ("s_branch", "s_endpgm"): break
                    prods.append((p, d)); d += p.states
                    if d >= 13: break
                d2 = 0
                for c in self.ins[tgt:]:
                    if c.kind == "meta": continue
                    for p, dp in prods:
                        if need(p, c) > dp + d2:
                            bad.append((p.text, c.text, need(p, c), dp + d2))
                    d2 += c.states
                    if d2 >= 13 or c.op in ("s_branch", "s_endpgm"): break
        return bad
    def text(self):
        out = []
        for i in self.ins:
            out.append(i.text if (i.label or i.directive) else "    " + i.text)
        return "\n".join(out) + "\n"
```

```python
import sys, struct, math
from asmlib import Asm

NAME = "gated_mix__softmax_full_mha__ssm_conv_s4__prompt"
def f32(x): return "0x%08x" % struct.unpack("<I", struct.pack("<f", x))[0]
LOG2E = 1.4426950408889634

QF, KV, OF, BT, KS, UT, GG = 0x000000, 0x200000, 0x600000, 0x800000, 0xA00000, 0xC00000, 0xF00000
WS_BYTES = 0x1000000

def vr(b, n): return f"v[{b}:{b+n-1}]"
def sr(b, n): return f"s[{b}:{b+n-1}]"

def srd(a, d, base, nbytes):
    a(f"s_mov_b32 s{d}, s{base}\ns_mov_b32 s{d+1}, s{base+1}\ns_mov_b32 s{d+2}, {hex(nbytes)}\ns_mov_b32 s{d+3}, 0x00020000")

def kernel_begin(a, name):
    a(f".globl {name}\n.p2align 8\n.type {name},@function\n{name}:")

def kd(name, vgpr, sgpr):
    acc = (vgpr + 3) // 4 * 4
    return f""".amdhsa_kernel {name}
  .amdhsa_next_free_vgpr {vgpr}
  .amdhsa_next_free_sgpr {sgpr}
  .amdhsa_accum_offset {acc}
  .amdhsa_group_segment_fixed_size 0
  .amdhsa_kernarg_size 128
  .amdhsa_user_sgpr_count 2
  .amdhsa_user_sgpr_kernarg_segment_ptr 1
  .amdhsa_system_sgpr_workgroup_id_x 1
.end_amdhsa_kernel
"""

class VM:
    def __init__(self, a): self.a = a; self.n = 0
    def op(self, text, k=1):
        self.a(text); self.n += k; return self.n
    def wait(self, mark):
        left = self.n - mark
        assert 0 <= left <= 63, left
        self.a(f"s_waitcnt vmcnt({left})")

def cmul(a, d, x, y, t, conj_y=False):
    if not conj_y:
        a(f"v_pk_mul_f32 {vr(t,2)}, {vr(x,2)}, {vr(y,2)} op_sel:[0,0] op_sel_hi:[0,1]")
        return f"v_pk_fma_f32 {vr(d,2)}, {vr(x,2)}, {vr(y,2)}, {vr(t,2)} op_sel:[1,1,0] op_sel_hi:[1,0,1] neg_lo:[1,0,0]"
    else:
        a(f"v_pk_mul_f32 {vr(t,2)}, {vr(x,2)}, {vr(y,2)} op_sel:[0,0] op_sel_hi:[0,1] neg_hi:[0,1]")
        return f"v_pk_fma_f32 {vr(d,2)}, {vr(x,2)}, {vr(y,2)}, {vr(t,2)} op_sel:[1,1,0] op_sel_hi:[1,0,1]"

def cmuls(a, jobs):
    second = [cmul(a, d, x, y, d) for (d, x, y) in jobs]
    for s in second: a(s)

def kernel_a(a):
    XRING, WRING, UTS, KGS = 0, 65536, 114688, 122880
    kernel_begin(a, "ka_kernel")
    a(f"""
    s_cmp_ge_u32 s2, 256
    s_cbranch_scc1 KA_end
    s_load_dwordx4 s[4:7], s[0:1], 0
    s_load_dwordx2 s[20:21], s[0:1], 120
    s_load_dwordx8 s[36:43], s[0:1], 32
    s_load_dwordx8 s[44:51], s[0:1], 64
    s_load_dwordx2 s[52:53], s[0:1], 96
    v_lshrrev_b32 v1, 6, v0
    v_and_b32 v0, 63, v0
    v_readfirstlane_b32 s3, v1
    s_and_b32 s22, s2, 7
    s_lshr_b32 s23, s2, 3
    s_and_b32 s24, s22, 1
    s_lshl_b32 s24, s24, 3
    s_and_b32 s25, s23, 7
    s_add_u32 s24, s24, s25          ; hp
    s_lshr_b32 s25, s22, 1
    s_lshl_b32 s25, s25, 2
    s_lshr_b32 s26, s23, 3
    s_add_u32 s25, s25, s26          ; tb
    s_and_b32 s26, s3, 3             ; w4
    s_lshl_b32 s27, s25, 2
    s_add_u32 s27, s27, s26
    s_lshl_b32 s28, s27, 15
    s_lshl_b32 s29, s26, 12          ; sXl = w4*4096
    s_mul_i32 s30, s26, 49152        ; 16*3072*w4
    s_lshl_b32 s31, s24, 6
    s_add_u32 s30, s30, s31          ; sWo
    s_mul_i32 s31, s26, 3072
    s_add_u32 s31, s31, {WRING}      ; sWl
    v_lshrrev_b32 v1, 3, v0
    v_lshlrev_b32 v2, 10, v1         ; (l>>3)*1024
    v_and_b32 v3, 7, v0
    v_lshrrev_b32 v4, 4, v0
    v_xor_b32 v3, v3, v4
    v_lshl_add_u32 v8, v3, 4, v2     ; i=0
    v_xor_b32 v9, 64, v8
    v_add_u32 v9, {8192-1024}, v9    ; i=1
    v_add_u32 v10, {2*(8192-1024)}, v8
    v_add_u32 v11, {2*(8192-1024)}, v9
    ; W voffset
    v_lshrrev_b32 v1, 2, v0
    v_mul_u32_u24 v2, 3072, v1
    v_and_b32 v3, 3, v0
    v_lshl_add_u32 v12, v3, 4, v2
    v_lshrrev_b32 v1, 5, v0
    v_lshlrev_b32 v1, 9, v1
    v_bfe_u32 v2, v0, 2, 2
    v_lshl_add_u32 v1, v2, 6, v1
    v_bfe_u32 v2, v0, 4, 1
    v_lshl_add_u32 v1, v2, 5, v1
    v_lshl_add_u32 v13, v3, 3, v1
    s_waitcnt lgkmcnt(0)
    """)
    srd(a, 8, 4, 2097152)
    srd(a, 12, 6, 1572864)
    srd(a, 16, 20, WS_BYTES)

    def dma_chunk():
        a("s_mov_b32 m0, s29")
        for i in range(4):
            a(f"buffer_load_dwordx4 v{8+i}, s[8:11], s28 offen offset:{i*1024} lds")
        a("s_mov_b32 m0, s31")
        for m in range(3):
            a(f"buffer_load_dwordx4 v12, s[12:15], s30 offen offset:{m*1024} lds")
        a("s_add_u32 s28, s28, 128\ns_add_u32 s29, s29, 16384\ns_add_u32 s30, s30, 196608\ns_add_u32 s31, s31, 12288")

    a("s_cmp_ge_u32 s3, 4\ns_cbranch_scc1 KA_helper")
    a("s_mov_b32 s32, 4\nKA_dma0:")
    dma_chunk()
    a("s_sub_u32 s32, s32, 1\ns_cmp_lg_u32 s32, 0\ns_cbranch_scc1 KA_dma0")
    a(f"""
    v_and_b32 v1, 31, v0
    v_lshrrev_b32 v2, 5, v0
    v_bfe_u32 v3, v0, 1, 3
    v_xor_b32 v2, v2, v3
    v_lshlrev_b32 v1, 7, v1
    v_lshl_add_u32 v1, v2, 4, v1
    s_lshl_b32 s33, s26, 12
    v_add_u32 v14, s33, v1
    v_xor_b32 v15, 32, v14
    v_xor_b32 v16, 64, v14
    v_xor_b32 v17, 96, v14
    v_add_u32 v18, {WRING}, v13
    """)
    F = [20, 36]
    AQ, AK, AV = 64, 80, 96
    for r in range(64, 112): a(f"v_mov_b32 v{r}, 0")
    def rd(f, slot, s):
        a(f"ds_read_b128 {vr(f,4)}, v{14+s} offset:{slot*16384}")
        for m in range(3):
            o = slot*12288 + s*3072 + m*1024
            a(f"ds_read_b64_tr_b16 {vr(f+4+4*m,2)}, v18 offset:{o}")
            a(f"ds_read_b64_tr_b16 {vr(f+6+4*m,2)}, v18 offset:{o+256}")
    def mm(f):
        a(f"v_mfma_f32_32x32x16_bf16 {vr(AQ,16)}, {vr(f+4,4)}, {vr(f,4)}, {vr(AQ,16)}")
        a(f"v_mfma_f32_32x32x16_bf16 {vr(AK,16)}, {vr(f+8,4)}, {vr(f,4)}, {vr(AK,16)}")
        a(f"v_mfma_f32_32x32x16_bf16 {vr(AV,16)}, {vr(f,4)}, {vr(f+12,4)}, {vr(AV,16)}")
    a("s_waitcnt vmcnt(21)\ns_barrier")
    rd(F[0], 0, 0)
    a("s_mov_b32 s32, 0\nKA_loop:")
    for slot in range(4):
        rd(F[1], slot, 1); a("s_waitcnt lgkmcnt(7)"); mm(F[0])
        rd(F[0], slot, 2); a("s_waitcnt lgkmcnt(7)"); mm(F[1])
        rd(F[1], slot, 3); a("s_waitcnt lgkmcnt(7)"); mm(F[0])
        a(f"s_waitcnt vmcnt({max(0, 14-7*slot)}) lgkmcnt(0)")
        if slot == 3:
            a("s_cmp_lg_u32 s32, 0\ns_cbranch_scc1 KA_last")
        a("s_barrier")
        rd(F[0], (slot+1) % 4, 0)
        mm(F[1])
    a("s_mov_b32 s32, 1\ns_branch KA_loop\nKA_last:")
    mm(F[1])
    a(f"""
    v_lshlrev_b32 v1, 4, v0                 ; Q voff
    v_and_b32 v2, 0x33, v0
    v_bfe_u32 v3, v0, 2, 1
    v_lshl_add_u32 v2, v3, 3, v2
    v_bfe_u32 v3, v0, 3, 1
    v_lshl_add_u32 v2, v3, 2, v2
    v_lshlrev_b32 v2, 4, v2
    v_and_b32 v3, 0x2f, v0
    v_lshlrev_b32 v3, 4, v3
    v_bfe_u32 v4, v0, 4, 1
    v_lshl_add_u32 v3, v4, 17, v3
    s_lshl_b32 s33, s24, 17
    s_lshl_b32 s34, s27, 10
    s_add_u32 s33, s33, s34
    s_add_u32 s34, s33, 65536
    s_lshl_b32 s35, s33, 1
    s_add_u32 s35, s35, {KV}
    s_add_u32 s36, s35, 131072
    s_mov_b32 s37, {f32(0.25*LOG2E)}
    """)
    for r in range(16): a(f"v_mul_f32 v{AQ+r}, s37, v{AQ+r}")
    for base, out in ((AQ, 20), (AK, 28), (AV, 36)):
        for r in range(8): a(f"v_cvt_pk_bf16_f32 v{out+r}, v{base+2*r}, v{base+2*r+1}")
    a(f"""
    buffer_store_dwordx4 v[20:23], v1, s[16:19], s33 offen
    buffer_store_dwordx4 v[24:27], v1, s[16:19], s34 offen
    buffer_store_dwordx4 v[28:31], v2, s[16:19], s35 offen
    buffer_store_dwordx4 v[32:35], v2, s[16:19], s36 offen
    buffer_store_dwordx4 v[36:39], v3, s[16:19], s35 offen offset:1024
    buffer_store_dwordx4 v[40:43], v3, s[16:19], s35 offen offset:1280
    s_endpgm
    """)
    a("KA_helper:")
    vm = VM(a)
    a(f"""
    s_add_u32 s28, s28, 512
    s_add_u32 s30, s30, {4*196608}
    s_lshr_b32 s33, s26, 1                  ; chl
    s_and_b32 s34, s26, 1                   ; nh
    s_lshl_b32 s35, s2, 1
    s_add_u32 s35, s35, s33                 ; channel d
    s_lshl_b32 s54, s35, 8
    s_lshl_b32 s55, s34, 7
    s_add_u32 s54, s54, s55
    v_lshl_add_u32 v1, v0, 1, s54
    s_lshl_b32 s55, s35, 1
    v_mov_b32 v2, s55
    """)
    for r in range(20, 28): a(f"v_mov_b32 v{r}, 0")
    for k in range(6): vm.op(f"global_load_short_d16_hi v{20+k}, v1, s[{36+2*k}:{37+2*k}]")
    vm.op("global_load_short_d16_hi v26, v2, s[48:49]")
    m_par = vm.op("global_load_short_d16_hi v27, v2, s[50:51]")
    a(f"""
    s_lshl_b32 s55, s2, 3
    s_lshl_b32 s56, s26, 1
    s_add_u32 s55, s55, s56
    s_lshl_b32 s56, s55, 10
    v_lshlrev_b32 v3, 5, v0                 ; lane*32 : (l>>5)*1024 + (l&31)*32
    v_and_b32 v4, 0x3ff, v3
    """)
    vm.op("buffer_load_dwordx4 v[28:31], v3, s[8:11], s56 offen")
    vm.op("buffer_load_dwordx4 v[32:35], v3, s[8:11], s56 offen offset:16")
    vm.op("global_load_dwordx4 v[36:39], v4, s[52:53]")
    m_gate = vm.op("global_load_dwordx4 v[40:43], v4, s[52:53] offset:16")
    a(f"""
    v_lshrrev_b32 v5, 2, v0
    v_lshlrev_b32 v5, 10, v5
    v_and_b32 v6, 3, v0
    v_lshl_add_u32 v5, v6, 4, v5
    s_lshl_b32 s56, s27, 15
    s_lshl_b32 s57, s24, 6
    s_add_u32 s56, s56, s57
    s_add_u32 s57, s56, 16384
    s_lshl_b32 s58, s26, 11
    s_add_u32 s58, s58, {UTS}
    s_mov_b32 m0, s58
    """)
    vm.op("buffer_load_dwordx4 v5, s[8:11], s56 offen lds")
    a("s_add_u32 m0, s58, 1024")
    m_ut = vm.op("buffer_load_dwordx4 v5, s[8:11], s57 offen lds")
    a(f"""
    s_lshl_b32 s59, s26, 13
    s_add_u32 s59, s59, {KGS}
    v_bfe_u32 v1, v0, 1, 2
    v_lshlrev_b32 v1, 4, v1
    v_lshl_add_u32 v1, v0, 6, v1
    v_add_u32 v14, s59, v1
    v_xor_b32 v15, 16, v14
    v_xor_b32 v16, 32, v14
    v_xor_b32 v17, 48, v14
    v_bfe_u32 v1, v0, 3, 1
    v_lshlrev_b32 v1, 4, v1
    v_xor_b32 v18, v13, v1
    v_add_u32 v18, s59, v18
    v_xor_b32 v19, 32, v18
    v_add_u32 v19, 256, v19
    s_barrier
    """)
    vm.wait(m_par)
    a(f"""
    v_mul_f32 v26, {f32(LOG2E)}, v26
    v_exp_f32 v26, v26
    v_cvt_pk_bf16_f32 v26, v26, v26
    v_lshlrev_b32 v26, 16, v26
    v_mul_f32 v20, v26, v20
    v_mul_f32 v21, v26, v21
    v_mul_f32 v20, {f32(LOG2E)}, v20
    v_mul_f32 v21, {f32(1/(2*math.pi))}, v21
    """)
    for (z, e) in ((44, 1.0), (46, 8.0), (48, 256.0)):
        a(f"""
        v_mul_f32 v52, {f32(e)}, v20
        v_mul_f32 v53, {f32(e)}, v21
        v_exp_f32 v52, v52
        v_fract_f32 v53, v53
        v_cos_f32 v{z}, v53
        v_sin_f32 v{z+1}, v53
        v_pk_mul_f32 {vr(z,2)}, {vr(z,2)}, v[52:53] op_sel:[0,0] op_sel_hi:[1,0]
        """)
    cmuls(a, [(50, 22, 24)])
    a("v_pk_mul_f32 v[50:51], v[50:51], v[26:27] op_sel:[0,0] op_sel_hi:[1,0]")
    vm.wait(m_gate)
    a("v_mov_b32 v54, 0")
    for k in range(8): a(f"v_dot2_f32_bf16 v54, v{28+k}, v{36+k}, v54\ns_nop 2" if False else f"v_dot2c_f32_bf16 v54, v{28+k}, v{36+k}")
    a("s_nop 2")
    for sh in (1, 2, 4, 8): a(f"v_add_f32_dpp v54, v54, v54 row_shr:{sh} row_mask:0xf bank_mask:0xf bound_ctrl:0")
    a("v_add_f32_dpp v54, v54, v54 row_bcast:15 row_mask:0xa bank_mask:0xf")
    a(f"""
    v_cvt_pk_bf16_f32 v54, v54, v54
    v_lshlrev_b32 v54, 16, v54
    v_mul_f32 v54, {f32(-LOG2E)}, v54
    v_exp_f32 v54, v54
    v_add_f32 v54, 1.0, v54
    v_rcp_f32 v54, v54
    v_cvt_pk_bf16_f32 v54, v54, v54
    v_lshlrev_b32 v54, 16, v54
    v_lshrrev_b32 v55, 5, v0
    v_lshlrev_b32 v55, 2, v55
    s_lshl_b32 s55, s55, 2
    s_add_u32 s55, s55, {GG}
    s_mov_b32 exec_lo, 0x80000000
    s_mov_b32 exec_hi, 0x80000000
    """)
    vm.op("buffer_store_dword v54, v55, s[16:19], s55 offen")
    a("s_mov_b64 exec, -1")
    a("s_barrier")
    dma_chunk(); vm.n += 7; m_c4 = vm.n
    P = lambda j: 64 + 2*j
    a(f"v_mov_b32 v{P(0)}, 1.0\nv_mov_b32 v{P(0)+1}, 0\nv_mov_b32 v{P(1)}, v46\nv_mov_b32 v{P(1)+1}, v47")
    cmuls(a, [(P(2), P(1), P(1))])
    cmuls(a, [(P(3), P(1), P(2)), (P(4), P(2), P(2))])
    cmuls(a, [(P(4+j), P(j), P(4)) for j in (1, 2, 3, 4)])
    cmuls(a, [(P(8+j), P(j), P(8)) for j in range(1, 9)])
    def pack_write(src, neg_im):
        pass
    def wr_chunk(c, srcs, neg_im):
        n = "-" if neg_im else ""
        for k in range(4):
            x, y = srcs[2*k], srcs[2*k+1]
            a(f"v_cvt_pk_bf16_f32 v{56+k}, v{x}, v{y}")
        for k in range(4):
            x, y = srcs[2*k], srcs[2*k+1]
            a(f"v_cvt_pk_bf16_f32 v{60+k}, {n}v{x+1}, {n}v{y+1}")
        a(f"ds_write_b128 v{14+c}, v[56:59]\nds_write_b128 v{14+c}, v[60:63] offset:4096")
    wr_chunk(0, [P(j) for j in range(8)], True)
    wr_chunk(1, [P(j) for j in range(8, 16)], True)
    a("s_barrier")
    dma_chunk(); vm.n += 7; m_c5 = vm.n
    cmuls(a, [(P(16+j), P(j), P(16)) for j in range(1, 16)])
    wr_chunk(2, [P(j) for j in range(16, 24)], True)
    wr_chunk(3, [P(j) for j in range(24, 32)], True)
    a("s_waitcnt lgkmcnt(0)")
    BF = 128
    for s in range(8):
        a(f"ds_read_b64_tr_b16 {vr(BF+4*s,2)}, v18 offset:{s*1024}\nds_read_b64_tr_b16 {vr(BF+4*s+2,2)}, v19 offset:{s*1024}")
    a("s_barrier")
    dma_chunk(); vm.n += 7; m_c6 = vm.n
    T = lambda i: 64 + 2*i
    a(f"v_mov_b32 v{T(0)}, v50\nv_mov_b32 v{T(0)+1}, v51")
    Z = {256: 48, 512: 86, 768: 88, 1024: 90, 1280: 92, 1536: 94, 1792: 96}
    cmuls(a, [(T(1), 50, 44), (82, 44, 44), (T(8), 50, 46), (Z[512], 48, 48)])
    cmuls(a, [(T(2), T(0), 82), (T(3), T(1), 82), (84, 82, 82), (Z[768], Z[512], 48), (Z[1024], Z[512], Z[512])])
    cmuls(a, [(T(4+i), T(i), 84) for i in range(4)] + [(Z[1280], Z[1024], 48), (Z[1536], Z[1024], Z[512]), (Z[1792], Z[1024], Z[768])])
    cols = [0,1,2,3,4,5,6,7, 256,258,260,512, 260,262,264,768, 516,520,1024,1032, 772,776,1536,1544, 1280,1288,0,0, 1792,1800,0,0]
    a("s_waitcnt lgkmcnt(0)")
    wr_chunk(0, [T(i) for i in range(8)], False)
    loc = {i: T(i) for i in range(9)}
    def chunk_vals(c):
        jobs = []; srcs = []; nxt = 98
        for al in cols[8*c:8*c+8]:
            if al not in loc_c:
                loc_c[al] = nxt; jobs.append((nxt, T(al % 256), Z[al - al % 256])); nxt += 2
            srcs.append(loc_c[al])
        cmuls(a, jobs)
        wr_chunk(c, srcs, False)
    loc_c = dict(loc); chunk_vals(1)
    vm.wait(m_c4)
    a("s_barrier")
    dma_chunk(); vm.n += 7; m_c7 = vm.n
    loc_c = dict(loc); chunk_vals(2)
    loc_c = dict(loc); chunk_vals(3)
    a("s_waitcnt lgkmcnt(0)")
    AFr = 64
    for s in range(8):
        a(f"ds_read_b64_tr_b16 {vr(AFr+4*s,2)}, v18 offset:{s*1024}\nds_read_b64_tr_b16 {vr(AFr+4*s+2,2)}, v19 offset:{s*1024}")
    a(f"v_add_u32 v5, s58, v13")
    D = 96
    for s in range(8):
        a(f"s_waitcnt lgkmcnt({14-2*s})")
        a(f"v_mfma_f32_32x32x16_bf16 {vr(D,16)}, {vr(AFr+4*s,4)}, {vr(BF+4*s,4)}, {'0' if s == 0 else vr(D,16)}")
    for i in range(2):
        a(f"ds_read_b64_tr_b16 {vr(28+4*i,2)}, v5 offset:{i*1024}\nds_read_b64_tr_b16 {vr(30+4*i,2)}, v5 offset:{i*1024+256}")
    a(f"""
    v_and_b32 v1, 31, v0
    v_mul_u32_u24 v1, 4608, v1
    v_lshrrev_b32 v2, 5, v0
    v_lshl_add_u32 v1, v2, 4, v1
    s_mul_i32 s56, s24, {32*4608}
    s_lshl_b32 s57, s25, 1
    s_add_u32 s57, s57, s33
    s_mul_i32 s57, s57, 144
    s_add_u32 s56, s56, s57
    s_lshl_b32 s57, s34, 6
    s_add_u32 s56, s56, s57
    s_add_u32 s56, s56, {UT}
    v_lshl_add_u32 v3, v0, 4, s59
    s_waitcnt lgkmcnt(0)
    """)
    vm.wait(m_c5)
    vm.op("buffer_store_dwordx4 v[28:31], v1, s[16:19], s56 offen")
    vm.op("buffer_store_dwordx4 v[32:35], v1, s[16:19], s56 offen offset:32")
    a("s_cmp_eq_u32 s34, 0\ns_cbranch_scc1 KA_h_nowr")
    for q in range(4): a(f"ds_write_b128 v3, {vr(D+4*q,4)} offset:{q*1024}")
    a("s_waitcnt lgkmcnt(0)\nKA_h_nowr:")
    a("s_barrier")
    a("s_cmp_lg_u32 s34, 0\ns_cbranch_scc1 KA_h_skip")
    for q in range(4): a(f"ds_read_b128 {vr(64+4*q,4)}, v3 offset:{8192+q*1024}")
    a(f"""
    v_and_b32 v1, 31, v0
    v_lshlrev_b32 v1, 4, v1                 ; 16*j
    v_lshrrev_b32 v2, 5, v0                 ; hi
    v_lshl_add_u32 v4, v2, 3, v1
    v_sub_u32 v4, {2*2044-512}, v4
    v_lshl_add_u32 v5, v2, 9, v1
    v_sub_u32 v5, {2*1528}, v5              ; seg2
    v_lshl_add_u32 v6, v2, 10, v1
    v_sub_u32 v6, {2*760}, v6               ; seg3 g=1 (g=0: +512)
    v_and_b32 v7, 1, v0
    v_cmp_eq_u32 vcc, 0, v7                 ; even j
    v_cmp_eq_u32 s[60:61], 0, v0
    v_cndmask_b32 v27, 0, v27, s[60:61]
    s_lshl_b32 s56, s35, 12
    s_add_u32 s56, s56, {KS}
    s_waitcnt lgkmcnt(0)
    """)
    for r in range(14): a(f"v_add_f32 v{D+r}, v{D+r}, v{64+r}")
    a(f"v_add_f32 v{D}, v{D}, v27")
    r = lambda k: f"v{D+k}"
    a(f"""
    v_cndmask_b32 v44, {r(11)}, {r(10)}, vcc
    v_cndmask_b32 v45, {r(13)}, {r(12)}, vcc
    v_cvt_pk_bf16_f32 v64, {r(3)}, {r(2)}
    v_cvt_pk_bf16_f32 v65, {r(1)}, {r(0)}
    v_cvt_pk_bf16_f32 v66, {r(6)}, {r(5)}
    v_cvt_pk_bf16_f32 v67, {r(4)}, {r(4)}
    v_cvt_pk_bf16_f32 v68, {r(9)}, {r(9)}
    v_cvt_pk_bf16_f32 v69, {r(8)}, {r(8)}
    v_cvt_pk_bf16_f32 v70, {r(8)}, {r(7)}
    v_cvt_pk_bf16_f32 v71, {r(7)}, {r(7)}
    v_cvt_pk_bf16_f32 v72, {r(11)}, {r(11)}
    v_cvt_pk_bf16_f32 v73, {r(11)}, v44
    v_cvt_pk_bf16_f32 v74, {r(10)}, {r(10)}
    v_mov_b32 v75, v74
    v_cvt_pk_bf16_f32 v76, {r(13)}, {r(13)}
    v_cvt_pk_bf16_f32 v77, {r(13)}, v45
    v_cvt_pk_bf16_f32 v78, {r(12)}, {r(12)}
    v_mov_b32 v79, v78
    KA_h_skip:
    """)
    vm.wait(m_c6)
    a("s_barrier")
    vm.wait(m_c7)
    a("s_barrier")
    a(f"""
    s_cmp_lg_u32 s34, 0
    s_cbranch_scc1 KA_end
    buffer_store_dwordx2 v[64:65], v4, s[16:19], s56 offen offset:512
    buffer_store_dwordx2 v[66:67], v4, s[16:19], s56 offen
    buffer_store_dwordx4 v[68:71], v5, s[16:19], s56 offen
    buffer_store_dwordx4 v[72:75], v6, s[16:19], s56 offen offset:512
    buffer_store_dwordx4 v[76:79], v6, s[16:19], s56 offen
    KA_end:
    s_endpgm
    """)
    return kd("ka_kernel", 160, 64), "; @launch kernel=ka_kernel grid=(256,1,1) block=(512,1,1) lds=155648"

def kernel_b(a):
    SS = 131072
    UL = SS
    RL = SS + 10240
    LDS = SS + 10240 + 2*8576
    kernel_begin(a, "kb_kernel")
    a(f"""
    s_cmp_ge_u32 s2, 256
    s_cbranch_scc1 KB_end
    s_load_dwordx2 s[20:21], s[0:1], 120
    v_lshrrev_b32 v1, 6, v0
    v_and_b32 v0, 63, v0
    v_readfirstlane_b32 s3, v1
    s_and_b32 s22, s2, 7
    s_lshl_b32 s22, s22, 2
    s_bfe_u32 s23, s2, 0x20003
    s_add_u32 s22, s22, s23          ; head
    s_lshr_b32 s23, s2, 5            ; qb
    v_lshlrev_b32 v1, 4, v0          ; lane*16
    s_lshl_b32 s24, s22, 17
    s_add_u32 s24, s24, {KV}
    s_waitcnt lgkmcnt(0)
    """)
    srd(a, 16, 20, WS_BYTES)
    a("s_cmp_ge_u32 s3, 8\ns_cbranch_scc1 KB_conv")
    Q, KFr, V0, V1 = 4, 8, 12, [16, 20]
    S = [32, 48]; O = 64; NM = 80
    a(f"""
    s_lshl_b32 s25, s23, 3
    s_add_u32 s25, s25, s3
    s_lshl_b32 s26, s22, 16
    s_lshl_b32 s27, s25, 10
    s_add_u32 s26, s26, s27
    buffer_load_dwordx4 {vr(Q,4)}, v1, s[16:19], s26 offen
    s_lshl_b32 s27, s3, 10
    s_add_u32 s28, s24, s27
    s_mov_b32 m0, s27
    """)
    for k in range(4):
        a(f"buffer_load_dwordx4 v1, s[16:19], s28 offen lds")
        if k < 3: a("s_add_u32 s28, s28, 8192\ns_add_u32 m0, m0, 8192")
    a(f"""
    v_and_b32 v2, 31, v0
    v_lshlrev_b32 v2, 2, v2
    s_lshl_b32 s27, s25, 7
    s_add_u32 s27, s27, {GG}
    buffer_load_dword v3, v2, s[16:19], s27 offen
    v_mov_b32 v24, 0xdddd
    s_mov_b32 s30, 0x0000ffff
    s_mov_b32 s31, 0x0000ffff
    v_mov_b32 v25, 0x3f803f80
    """)
    for r in range(V0, V0+12): a(f"v_mov_b32 v{r}, v25")
    a(f"""
    s_mov_b32 s32, 1
    s_mov_b32 s33, 3
    s_waitcnt vmcnt(1)
    s_barrier
    KB_maxpass:
    v_mov_b32 v26, v1
    v_mov_b32 v27, 0xff800000
    KB_maxloop:
    ds_read_b128 {vr(KFr,4)}, v26
    v_add_u32 v26, 2048, v26
    s_waitcnt lgkmcnt(0)
    v_mfma_f32_32x32x16_bf16 {vr(S[0],16)}, {vr(KFr,4)}, {vr(Q,4)}, 0
    s_sub_u32 s32, s32, 1
    s_cmp_lg_u32 s32, 0
    """)
    for k in range(8): a(f"v_max3_f32 v27, v27, v{S[0]+2*k}, v{S[0]+2*k+1}")
    a(f"""
    s_cbranch_scc1 KB_maxloop
    ds_read_b128 {vr(KFr,4)}, v1
    v_mov_b32 v28, v27
    v_permlane32_swap_b32 v27, v28
    v_max_f32 v27, v27, v28
    v_sub_f32 v27, 0, v27
    """)
    for r in range(16): a(f"v_mov_b32 v{NM+r}, v27")
    for r in range(16): a(f"v_mov_b32 v{O+r}, 0")
    for r in range(8, 16): a(f"v_mov_b32 v{S[1]+r}, 0")
    a(f"""
    v_mov_b32 v26, v1
    s_waitcnt lgkmcnt(0)
    v_mfma_f32_32x32x16_bf16 {vr(S[0],16)}, {vr(KFr,4)}, {vr(Q,4)}, {vr(NM,16)}
    ds_read_b128 {vr(KFr,4)}, v26 offset:2048
    s_mov_b64 exec, s[30:31]
    ds_read_b128 {vr(V0,4)}, v26 offset:1024
    ds_read_b128 {vr(V1[0],4)}, v26 offset:1280
    s_mov_b64 exec, -1
    s_mov_b32 s34, 0
    s_nop 7
    KB_loop:
    s_cmp_lg_u32 s34, s33
    s_cbranch_scc1 KB_nobar
    s_barrier
    KB_nobar:
    """)
    UN = 4
    for i in range(UN):
        cur, nxt = S[i & 1], S[(i+1) & 1]
        e = [f"v_exp_f32 v{cur+k}, v{cur+k}" for k in range(16)]
        for x in e[0:2]: a(x)
        a(f"v_smfmac_f32_32x32x32_bf16 {vr(O,16)}, {vr(V1[(i+1)&1],4)}, {vr(nxt+8,8)}, v24")
        for x in e[2:7]: a(x)
        a("s_waitcnt lgkmcnt(0)")
        a(f"v_mfma_f32_32x32x16_bf16 {vr(nxt,16)}, {vr(KFr,4)}, {vr(Q,4)}, {vr(NM,16)}")
        for x in e[7:12]: a(x)
        a(f"v_smfmac_f32_32x32x32_bf16 {vr(O,16)}, {vr(V0,4)}, {vr(cur,8)}, v24")
        a(f"ds_read_b128 {vr(KFr,4)}, v26 offset:{(i+2)*2048}")
        a("s_mov_b64 exec, s[30:31]")
        a(f"ds_read_b128 {vr(V0,4)}, v26 offset:{(i+1)*2048+1024}")
        a(f"ds_read_b128 {vr(V1[(i+1)&1],4)}, v26 offset:{(i+1)*2048+1280}")
        a("s_mov_b64 exec, -1")
        for x in e[12:16]: a(x)
    a(f"""
    v_add_u32 v26, {UN*2048}, v26
    s_add_u32 s34, s34, 1
    s_cmp_lt_u32 s34, {64//UN}
    s_cbranch_scc1 KB_loop
    v_smfmac_f32_32x32x32_bf16 {vr(O,16)}, {vr(V1[1],4)}, {vr(S[1]+8,8)}, v24
    s_waitcnt vmcnt(0) lgkmcnt(0)
    v_rcp_f32 v28, v{O+8}
    v_mov_b32 v29, 0
    v_mul_f32 v28, v28, v3
    """)
    for r in range(8): a(f"v_mul_f32 v{S[0]+r}, v{O+r}, v28")
    for r in range(8): a(f"v_fma_f32 v29, v{S[0]+r}, 0, v29")
    a(f"""
    v_cmp_u_f32 vcc, v29, v29
    s_mov_b32 s36, {f32(2.0**64)}
    v_cmp_nge_f32 s[38:39], s36, v{O+8}
    s_or_b64 vcc, vcc, s[38:39]
    s_cmp_eq_u32 s33, 3
    s_cselect_b64 vcc, vcc, 0
    s_cbranch_vccz KB_store
    s_mov_b32 s32, 64
    s_mov_b32 s33, 1000
    """)
    for r in range(V0, V0+12): a(f"v_mov_b32 v{r}, v25")
    a("s_branch KB_maxpass\nKB_store:")
    for r in range(4): a(f"v_cvt_pk_bf16_f32 v{S[1]+r}, v{S[0]+2*r}, v{S[0]+2*r+1}")
    a(f"""
    s_lshl_b32 s26, s25, 15
    s_lshl_b32 s27, s22, 10
    s_add_u32 s26, s26, s27
    s_add_u32 s26, s26, {OF}
    buffer_store_dwordx4 {vr(S[1],4)}, v1, s[16:19], s26 offen
    s_endpgm
    """)
    a(f"""
    KB_conv:
    s_sub_u32 s3, s3, 8
    s_lshr_b32 s25, s3, 1            ; chl
    s_and_b32 s26, s3, 1             ; p
    s_lshl_b32 s27, s2, 1
    s_add_u32 s27, s27, s25          ; channel
    s_mul_i32 s28, s25, 8576
    s_add_u32 s28, s28, {RL}
    s_mul_i32 s29, s25, 5120
    s_add_u32 s29, s29, {UL}
    s_lshl_b32 s30, s26, 11          ; p*2048
    s_lshl_b32 s31, s27, 12
    s_add_u32 s31, s31, {KS}
    s_add_u32 s31, s31, s30
    s_add_u32 m0, s28, s30
    s_mul_i32 s32, s27, 4608
    buffer_load_dwordx4 v1, s[16:19], s31 offen lds
    buffer_load_dwordx4 v1, s[16:19], s31 offen offset:1024 lds
    s_add_u32 s32, s32, {UT}
    s_add_u32 s32, s32, s30
    s_add_u32 m0, s29, s30
    s_nop 0
    buffer_load_dwordx4 v1, s[16:19], s32 offen lds
    buffer_load_dwordx4 v1, s[16:19], s32 offen offset:1024 lds
    buffer_load_dwordx4 v1, s[16:19], s32 offen offset:2048 lds
    s_lshl_b32 s33, s3, 12
    s_add_u32 s33, s33, 32768
    s_add_u32 s34, s33, s24
    s_mov_b32 s35, 0
    KB_bulk:
    s_mov_b32 m0, s33
    s_add_u32 s33, s33, 16384
    """)
    for k in range(4): a(f"buffer_load_dwordx4 v1, s[16:19], s34 offen offset:{k*1024} lds")
    a(f"""
    s_add_u32 s34, s34, 16384
    s_add_u32 s35, s35, 1
    s_cmp_lg_u32 s35, 3
    s_cbranch_scc1 KB_bulk2
    v_mov_b32 v4, 0
    v_lshlrev_b32 v2, 2, v0
    v_add_u32 v2, s28, v2
    s_mov_b32 exec_hi, 0
    ds_write_b32 v2, v4 offset:4096
    ds_write_b32 v2, v4 offset:{4288+4096}
    s_mov_b64 exec, -1
    s_waitcnt vmcnt(12) lgkmcnt(0)
    s_barrier
    KB_bulk2:
    s_cmp_lt_u32 s35, 6
    s_cbranch_scc1 KB_bulk
    v_add_u32 v2, s28, v1
    v_add_u32 v2, s30, v2
    ds_read_b128 v[8:11], v2 offset:2
    ds_read_b128 v[12:15], v2 offset:1026
    ; addresses
    v_and_b32 v3, 31, v0             ; b / n
    v_lshrrev_b32 v4, 5, v0          ; hi
    s_lshl_b32 s36, s26, 5
    s_sub_u32 s36, 63, s36
    v_lshl_add_u32 v5, v4, 3, s36
    v_sub_u32 v5, v5, v3             ; i0
    v_and_b32 v6, 1, v5
    v_lshrrev_b32 v5, 1, v5
    v_lshlrev_b32 v5, 2, v5
    v_mul_u32_u24 v6, 4288, v6
    v_add3_u32 v5, v5, v6, s28       ; A addr
    v_mul_u32_u24 v6, 144, v3
    v_lshl_add_u32 v6, v4, 4, v6
    s_sub_u32 s36, s29, {31*144}
    v_add_u32 v6, s36, v6            ; B addr
    s_waitcnt lgkmcnt(0)
    ds_write_b128 v2, v[8:11] offset:4288
    ds_write_b128 v2, v[12:15] offset:{4288+1024}
    """)
    for r in range(32, 64): a(f"v_mov_b32 v{r}, 0")
    a(f"""
    s_mov_b32 s35, 31
    s_waitcnt vmcnt(0) lgkmcnt(0)
    s_barrier
    KB_cloop:
    s_lshl_b32 exec_lo, -1, s35
    s_lshl_b32 exec_hi, -1, s35
    """)
    for s in range(4): a(f"ds_read_b128 {vr(32+4*s,4)}, v6 offset:{32*s}")
    a("s_mov_b64 exec, -1")
    for s in range(4):
        a(f"ds_read2_b32 {vr(16+4*s,2)}, v5 offset0:{8*s} offset1:{8*s+1}")
        a(f"ds_read2_b32 {vr(18+4*s,2)}, v5 offset0:{8*s+2} offset1:{8*s+3}")
    a("v_add_u32 v5, 128, v5\nv_add_u32 v6, 144, v6")
    for s in range(4):
        a(f"s_waitcnt lgkmcnt({6-2*s})")
        a(f"v_mfma_f32_32x32x16_bf16 v[48:63], {vr(16+4*s,4)}, {vr(32+4*s,4)}, v[48:63]")
    a(f"""
    s_sub_u32 s35, s35, 1
    s_cmp_ge_i32 s35, 0
    s_cbranch_scc1 KB_cloop
    v_lshlrev_b32 v3, 7, v3
    v_lshl_add_u32 v3, v4, 4, v3     ; n*128 + hi*16
    s_lshl_b32 s31, s27, 12
    s_lshl_b32 s32, s26, 6
    s_add_u32 s31, s31, s32
    s_add_u32 s31, s31, {BT}
    """)
    for r in range(8): a(f"v_cvt_pk_bf16_f32 v{16+r}, v{48+2*r}, v{49+2*r}")
    a(f"""
    buffer_store_dwordx4 v[16:19], v3, s[16:19], s31 offen
    buffer_store_dwordx4 v[20:23], v3, s[16:19], s31 offen offset:32
    KB_end:
    s_endpgm
    """)
    return kd("kb_kernel", 96, 48), f"; @launch kernel=kb_kernel grid=(256,1,1) block=(768,1,1) lds={LDS}"

def kernel_c(a):
    kernel_begin(a, "kc_kernel")
    a(f"""
    s_cmp_ge_u32 s2, 256
    s_cbranch_scc1 KC_end
    s_load_dwordx2 s[4:5], s[0:1], 16
    s_load_dwordx2 s[6:7], s[0:1], 104
    s_load_dwordx2 s[20:21], s[0:1], 120
    v_lshrrev_b32 v1, 6, v0
    v_and_b32 v0, 63, v0
    v_readfirstlane_b32 s3, v1
    s_and_b32 s22, s2, 7
    s_lshl_b32 s22, s22, 2
    s_bfe_u32 s23, s2, 0x20003
    s_add_u32 s22, s22, s23
    s_lshr_b32 s23, s2, 5
    s_and_b32 s24, s3, 1             ; wt
    s_lshr_b32 s25, s3, 1            ; wc
    s_lshl_b32 s26, s22, 1
    s_add_u32 s26, s26, s24          ; t tile
    s_lshl_b32 s27, s23, 1
    s_add_u32 s27, s27, s25
    v_lshlrev_b32 v1, 4, v0
    v_lshrrev_b32 v2, 2, v0
    v_lshlrev_b32 v2, 10, v2
    v_and_b32 v3, 3, v0
    v_lshl_add_u32 v2, v3, 4, v2
    s_lshl_b32 s28, s24, 18
    s_lshl_b32 s29, s27, 6
    s_add_u32 s28, s28, s29
    s_lshl_b32 s29, s25, 15
    s_lshl_b32 s30, s24, 14
    s_add_u32 s29, s29, s30
    s_waitcnt lgkmcnt(0)
    """)
    srd(a, 8, 4, 524288)
    srd(a, 12, 6, 2097152)
    srd(a, 16, 20, WS_BYTES)
    a(f"""
    s_mov_b32 m0, s29
    s_mov_b32 s30, 16
    KC_dma:
    buffer_load_dwordx4 v2, s[8:11], s28 offen lds
    s_add_u32 s28, s28, 16384
    s_add_u32 m0, m0, 1024
    s_sub_u32 s30, s30, 1
    s_cmp_lg_u32 s30, 0
    s_cbranch_scc1 KC_dma
    v_and_b32 v4, 31, v0
    v_lshrrev_b32 v5, 5, v0
    v_lshlrev_b32 v6, 2, v4
    s_lshl_b32 s30, s26, 7
    s_add_u32 s30, s30, {GG}
    buffer_load_dword v7, v6, s[16:19], s30 offen
    v_lshlrev_b32 v6, 12, v4
    v_lshl_add_u32 v6, v5, 4, v6     ; d*4096 + hi*16
    s_lshl_b32 s30, s27, 17
    s_lshl_b32 s31, s26, 6
    s_add_u32 s30, s30, s31
    s_add_u32 s30, s30, {BT}
    buffer_load_dwordx4 v[8:11], v6, s[16:19], s30 offen
    buffer_load_dwordx4 v[12:15], v6, s[16:19], s30 offen offset:32
    s_lshl_b32 s30, s26, 15
    s_add_u32 s30, s30, {OF}
    """)
    OFr = 64
    for h in range(32):
        if h % 4 == 0 and h: a("s_add_u32 s30, s30, 4096")
        a(f"buffer_load_dwordx4 {vr(OFr+4*h,4)}, v1, s[16:19], s30 offen offset:{(h%4)*1024}")
    a(f"""
    v_lshlrev_b32 v2, 8, v5
    v_bfe_u32 v3, v0, 2, 2
    v_lshl_add_u32 v2, v3, 6, v2
    v_bfe_u32 v3, v0, 4, 1
    v_lshl_add_u32 v2, v3, 5, v2
    v_and_b32 v3, 3, v0
    v_lshl_add_u32 v2, v3, 3, v2
    s_lshl_b32 s29, s25, 15
    v_add_u32 v2, s29, v2
    v_lshrrev_b32 v3, 3, v4
    v_bfe_u32 v6, v4, 1, 1
    v_lshl_add_u32 v3, v3, 1, v6
    v_bfe_u32 v6, v4, 2, 1
    v_xor_b32 v6, v6, v5
    v_lshl_add_u32 v3, v6, 4, v3
    v_and_b32 v6, 1, v4
    v_lshlrev_b32 v6, 4, v6
    s_waitcnt vmcnt(34)
    v_sub_f32 v7, 1.0, v7
    v_cvt_pk_bf16_f32 v7, v7, v7
    v_and_b32 v7, 0xffff, v7
    v_lshlrev_b32 v7, v6, v7
    """)
    for k in range(8):
        a(f"v_cmp_eq_u32 vcc, {k}, v3\nv_cndmask_b32 v{16+k}, 0, v7, vcc")
    a(f"""
    s_barrier
    s_waitcnt vmcnt(32)
    v_mfma_f32_32x32x16_bf16 v[48:63], v[8:11], v[16:19], 0
    v_mfma_f32_32x32x16_bf16 v[48:63], v[12:15], v[20:23], v[48:63]
    """)
    NB = 4
    def rd(h):
        f = 24 + 4*(h % NB)
        a(f"ds_read_b64_tr_b16 {vr(f,2)}, v2 offset:{h*1024}\nds_read_b64_tr_b16 {vr(f+2,2)}, v2 offset:{h*1024+512}")
    for h in range(NB-1): rd(h)
    for h in range(32):
        if h + NB - 1 < 32: rd(h + NB - 1)
        left = min(NB-1, 31-h)
        a(f"s_waitcnt vmcnt({31-h}) lgkmcnt({2*left})")
        a(f"v_mfma_f32_32x32x16_bf16 v[48:63], {vr(24+4*(h%NB),4)}, {vr(OFr+4*h,4)}, v[48:63]")
    a(f"""
    v_lshlrev_b32 v1, 10, v4
    v_lshl_add_u32 v1, v5, 4, v1     ; t*1024 + hi*16
    s_lshl_b32 s30, s26, 15
    s_lshl_b32 s31, s27, 6
    s_add_u32 s30, s30, s31
    """)
    for r in range(8): a(f"v_cvt_pk_bf16_f32 v{8+r}, v{48+2*r}, v{49+2*r}")
    a(f"""
    v_permlane32_swap_b32 v8, v10
    v_permlane32_swap_b32 v9, v11
    v_permlane32_swap_b32 v12, v14
    v_permlane32_swap_b32 v13, v15
    buffer_store_dwordx4 v[8:11], v1, s[12:15], s30 offen
    buffer_store_dwordx4 v[12:15], v1, s[12:15], s30 offen offset:32
    KC_end:
    s_endpgm
    """)
    return kd("kc_kernel", 192, 40), "; @launch kernel=kc_kernel grid=(256,1,1) block=(256,1,1) lds=65536"

def main(out):
    a = Asm()
    parts = [kernel_a(a), kernel_b(a), kernel_c(a)]
    bad = a.check_branches()
    for b in bad: print("BRANCH HAZARD:", b)
    head = "; generated by work/gen/gen.py\n" + "\n".join(p[1] for p in parts) + '\n.amdgcn_target "amdgcn-amd-amdhsa--gfx950"\n.text\n'
    tail = '.section .rodata,"a"\n' + "".join(".p2align 6\n" + p[0] for p in parts)
    open(out, "w").write(head + a.text() + tail)

if __name__ == "__main__":
    main(sys.argv[1] if len(sys.argv) > 1 else f"cdna_kernels/{NAME}.s")
```

```python
import sys, struct, math
from asmlib import Asm

NAME = "gated_mix__softmax_full_mha__ssm_conv_s4__prompt"
def f32(x): return "0x%08x" % struct.unpack("<I", struct.pack("<f", x))[0]
LOG2E = 1.4426950408889634

QF, KV, OF, BT, KS, UT, GG = 0x000000, 0x200000, 0x600000, 0x800000, 0xA00000, 0xC00000, 0xF00000
WS_BYTES = 0x1000000

def vr(b, n): return f"v[{b}:{b+n-1}]"
def sr(b, n): return f"s[{b}:{b+n-1}]"

def srd(a, d, base, nbytes):
    a(f"s_mov_b32 s{d}, s{base}\ns_mov_b32 s{d+1}, s{base+1}\ns_mov_b32 s{d+2}, {hex(nbytes)}\ns_mov_b32 s{d+3}, 0x00020000")

def kernel_begin(a, name):
    a(f".globl {name}\n.p2align 8\n.type {name},@function\n{name}:")

def kd(name, vgpr, sgpr):
    acc = (vgpr + 3) // 4 * 4
    if STAMP: sgpr = 96
    return f""".amdhsa_kernel {name}
  .amdhsa_next_free_vgpr {vgpr}
  .amdhsa_next_free_sgpr {sgpr}
  .amdhsa_accum_offset {acc}
  .amdhsa_group_segment_fixed_size 0
  .amdhsa_kernarg_size 128
  .amdhsa_user_sgpr_count 2
  .amdhsa_user_sgpr_kernarg_segment_ptr 1
  .amdhsa_system_sgpr_workgroup_id_x 1
.end_amdhsa_kernel
"""

STAMP = False
ST = 0xF80000
def stamp(a, k):
    if STAMP: a(f"s_memrealtime s[{64+2*k}:{65+2*k}]")
def stamp_flush(a, kern, n, wave="s3"):
    if not STAMP: return
    a(f"s_memrealtime s[{64+2*n}:{65+2*n}]")
    a(f"s_lshl_b32 s90, s2, 9\ns_lshl_b32 s91, {wave}, 5\ns_add_u32 s90, s90, s91\ns_add_u32 s90, s90, {ST + kern*0x20000}\ns_waitcnt lgkmcnt(0)\ns_mov_b64 exec, 1\nv_mov_b32 v0, 0")
    for k in range(n+1):
        a(f"v_mov_b32 v1, s{64+2*k}\nbuffer_store_dword v1, v0, s[16:19], s90 offen offset:{4*k}")

class VM:
    def __init__(self, a): self.a = a; self.n = 0
    def op(self, text, k=1):
        self.a(text); self.n += k; return self.n
    def wait(self, mark):
        left = self.n - mark
        assert 0 <= left <= 63, left
        self.a(f"s_waitcnt vmcnt({left})")

def cmul(a, d, x, y, t, conj_y=False):
    if not conj_y:
        a(f"v_pk_mul_f32 {vr(t,2)}, {vr(x,2)}, {vr(y,2)} op_sel:[0,0] op_sel_hi:[0,1]")
        return f"v_pk_fma_f32 {vr(d,2)}, {vr(x,2)}, {vr(y,2)}, {vr(t,2)} op_sel:[1,1,0] op_sel_hi:[1,0,1] neg_lo:[1,0,0]"
    else:
        a(f"v_pk_mul_f32 {vr(t,2)}, {vr(x,2)}, {vr(y,2)} op_sel:[0,0] op_sel_hi:[0,1] neg_hi:[0,1]")
        return f"v_pk_fma_f32 {vr(d,2)}, {vr(x,2)}, {vr(y,2)}, {vr(t,2)} op_sel:[1,1,0] op_sel_hi:[1,0,1]"

def cmuls(a, jobs):
    second = [cmul(a, d, x, y, d) for (d, x, y) in jobs]
    for s in second: a(s)

def kernel_a(a):
    XRING, WRING, UTS, KGS = 0, 65536, 114688, 122880
    kernel_begin(a, "ka_kernel")
    a(f"""
    s_cmp_ge_u32 s2, 256
    s_cbranch_scc1 KA_end
    {"s_memrealtime s[64:65]" if STAMP else ""}
    s_load_dwordx4 s[4:7], s[0:1], 0
    s_load_dwordx2 s[20:21], s[0:1], 120
    s_load_dwordx8 s[36:43], s[0:1], 32
    s_load_dwordx8 s[44:51], s[0:1], 64
    s_load_dwordx2 s[52:53], s[0:1], 96
    v_lshrrev_b32 v1, 6, v0
    v_and_b32 v0, 63, v0
    v_readfirstlane_b32 s3, v1
    s_and_b32 s22, s2, 7
    s_lshr_b32 s23, s2, 3
    s_and_b32 s24, s22, 1
    s_lshl_b32 s24, s24, 3
    s_and_b32 s25, s23, 7
    s_add_u32 s24, s24, s25          ; hp
    s_lshr_b32 s25, s22, 1
    s_lshl_b32 s25, s25, 2
    s_lshr_b32 s26, s23, 3
    s_add_u32 s25, s25, s26          ; tb
    s_and_b32 s26, s3, 3             ; w4
    s_lshl_b32 s27, s25, 2
    s_add_u32 s27, s27, s26
    s_lshl_b32 s28, s27, 15
    s_lshl_b32 s29, s26, 12          ; sXl = w4*4096
    s_mul_i32 s30, s26, 49152        ; 16*3072*w4
    s_lshl_b32 s31, s24, 6
    s_add_u32 s30, s30, s31          ; sWo
    s_mul_i32 s31, s26, 3072
    s_add_u32 s31, s31, {WRING}      ; sWl
    v_lshrrev_b32 v1, 3, v0
    v_lshlrev_b32 v2, 10, v1         ; (l>>3)*1024
    v_and_b32 v3, 7, v0
    v_lshrrev_b32 v4, 4, v0
    v_xor_b32 v3, v3, v4
    v_lshl_add_u32 v8, v3, 4, v2     ; i=0
    v_xor_b32 v9, 64, v8
    v_add_u32 v9, {8192-1024}, v9    ; i=1
    v_add_u32 v10, {2*(8192-1024)}, v8
    v_add_u32 v11, {2*(8192-1024)}, v9
    ; W voffset
    v_lshrrev_b32 v1, 2, v0
    v_mul_u32_u24 v2, 3072, v1
    v_and_b32 v3, 3, v0
    v_lshl_add_u32 v12, v3, 4, v2
    v_lshrrev_b32 v1, 5, v0
    v_lshlrev_b32 v1, 9, v1
    v_bfe_u32 v2, v0, 2, 2
    v_lshl_add_u32 v1, v2, 6, v1
    v_bfe_u32 v2, v0, 4, 1
    v_lshl_add_u32 v1, v2, 5, v1
    v_lshl_add_u32 v13, v3, 3, v1
    s_waitcnt lgkmcnt(0)
    """)
    srd(a, 8, 4, 2097152)
    srd(a, 12, 6, 1572864)
    srd(a, 16, 20, WS_BYTES)

    def dma_chunk():
        a("s_mov_b32 m0, s29")
        for i in range(4):
            a(f"buffer_load_dwordx4 v{8+i}, s[8:11], s28 offen offset:{i*1024} lds")
        a("s_mov_b32 m0, s31")
        for m in range(3):
            a(f"buffer_load_dwordx4 v12, s[12:15], s30 offen offset:{m*1024} lds")
        a("s_add_u32 s28, s28, 128\ns_add_u32 s29, s29, 16384\ns_add_u32 s30, s30, 196608\ns_add_u32 s31, s31, 12288")

    a("s_cmp_ge_u32 s3, 4\ns_cbranch_scc1 KA_helper")
    a("s_mov_b32 s32, 4\nKA_dma0:")
    dma_chunk()
    a("s_sub_u32 s32, s32, 1\ns_cmp_lg_u32 s32, 0\ns_cbranch_scc1 KA_dma0")
    a(f"""
    v_and_b32 v1, 31, v0
    v_lshrrev_b32 v2, 5, v0
    v_bfe_u32 v3, v0, 1, 3
    v_xor_b32 v2, v2, v3
    v_lshlrev_b32 v1, 7, v1
    v_lshl_add_u32 v1, v2, 4, v1
    s_lshl_b32 s33, s26, 12
    v_add_u32 v14, s33, v1
    v_xor_b32 v15, 32, v14
    v_xor_b32 v16, 64, v14
    v_xor_b32 v17, 96, v14
    v_add_u32 v18, {WRING}, v13
    """)
    F = [20, 36]
    AQ, AK, AV = 64, 80, 96
    for r in range(64, 112): a(f"v_mov_b32 v{r}, 0")
    def rd(f, slot, s):
        a(f"ds_read_b128 {vr(f,4)}, v{14+s} offset:{slot*16384}")
        for m in range(3):
            o = slot*12288 + s*3072 + m*1024
            a(f"ds_read_b64_tr_b16 {vr(f+4+4*m,2)}, v18 offset:{o}")
            a(f"ds_read_b64_tr_b16 {vr(f+6+4*m,2)}, v18 offset:{o+256}")
    def mm(f):
        a(f"v_mfma_f32_32x32x16_bf16 {vr(AQ,16)}, {vr(f+4,4)}, {vr(f,4)}, {vr(AQ,16)}")
        a(f"v_mfma_f32_32x32x16_bf16 {vr(AK,16)}, {vr(f+8,4)}, {vr(f,4)}, {vr(AK,16)}")
        a(f"v_mfma_f32_32x32x16_bf16 {vr(AV,16)}, {vr(f,4)}, {vr(f+12,4)}, {vr(AV,16)}")
    stamp(a, 1)
    a("s_waitcnt vmcnt(21)\ns_barrier")
    stamp(a, 2)
    rd(F[0], 0, 0)
    a("s_mov_b32 s32, 0\nKA_loop:")
    for slot in range(4):
        rd(F[1], slot, 1); a("s_waitcnt lgkmcnt(7)"); mm(F[0])
        rd(F[0], slot, 2); a("s_waitcnt lgkmcnt(7)"); mm(F[1])
        rd(F[1], slot, 3); a("s_waitcnt lgkmcnt(7)"); mm(F[0])
        a(f"s_waitcnt vmcnt({max(0, 14-7*slot)}) lgkmcnt(0)")
        if slot == 3:
            a("s_cmp_lg_u32 s32, 0\ns_cbranch_scc1 KA_last")
        a("s_barrier")
        rd(F[0], (slot+1) % 4, 0)
        mm(F[1])
    stamp(a, 3)
    a("s_mov_b32 s32, 1\ns_branch KA_loop\nKA_last:")
    stamp(a, 4)
    mm(F[1])
    a(f"""
    v_lshlrev_b32 v1, 4, v0                 ; Q voff
    v_and_b32 v2, 0x33, v0
    v_bfe_u32 v3, v0, 2, 1
    v_lshl_add_u32 v2, v3, 3, v2
    v_bfe_u32 v3, v0, 3, 1
    v_lshl_add_u32 v2, v3, 2, v2
    v_lshlrev_b32 v2, 4, v2
    v_and_b32 v3, 0x2f, v0
    v_lshlrev_b32 v3, 4, v3
    v_bfe_u32 v4, v0, 4, 1
    v_lshl_add_u32 v3, v4, 17, v3
    s_lshl_b32 s33, s24, 17
    s_lshl_b32 s34, s27, 10
    s_add_u32 s33, s33, s34
    s_add_u32 s34, s33, 65536
    s_lshl_b32 s35, s33, 1
    s_add_u32 s35, s35, {KV}
    s_add_u32 s36, s35, 131072
    s_mov_b32 s37, {f32(0.25*LOG2E)}
    """)
    for r in range(16): a(f"v_mul_f32 v{AQ+r}, s37, v{AQ+r}")
    for base, out in ((AQ, 20), (AK, 28), (AV, 36)):
        for r in range(8): a(f"v_cvt_pk_bf16_f32 v{out+r}, v{base+2*r}, v{base+2*r+1}")
    a(f"""
    buffer_store_dwordx4 v[20:23], v1, s[16:19], s33 offen
    buffer_store_dwordx4 v[24:27], v1, s[16:19], s34 offen
    buffer_store_dwordx4 v[28:31], v2, s[16:19], s35 offen
    buffer_store_dwordx4 v[32:35], v2, s[16:19], s36 offen
    buffer_store_dwordx4 v[36:39], v3, s[16:19], s35 offen offset:1024
    buffer_store_dwordx4 v[40:43], v3, s[16:19], s35 offen offset:1280
    """)
    if STAMP: a("s_waitcnt vmcnt(0)")
    stamp_flush(a, 0, 5)
    a("s_endpgm")
    a("KA_helper:")
    vm = VM(a)
    a(f"""
    s_add_u32 s28, s28, 512
    s_add_u32 s30, s30, {4*196608}
    s_lshr_b32 s33, s26, 1                  ; chl
    s_and_b32 s34, s26, 1                   ; nh
    s_lshl_b32 s35, s2, 1
    s_add_u32 s35, s35, s33                 ; channel d
    s_lshl_b32 s54, s35, 8
    s_lshl_b32 s55, s34, 7
    s_add_u32 s54, s54, s55
    v_lshl_add_u32 v1, v0, 1, s54
    s_lshl_b32 s55, s35, 1
    v_mov_b32 v2, s55
    """)
    for r in range(20, 28): a(f"v_mov_b32 v{r}, 0")
    for k in range(6): vm.op(f"global_load_short_d16_hi v{20+k}, v1, s[{36+2*k}:{37+2*k}]")
    vm.op("global_load_short_d16_hi v26, v2, s[48:49]")
    m_par = vm.op("global_load_short_d16_hi v27, v2, s[50:51]")
    a(f"""
    s_lshl_b32 s55, s2, 3
    s_lshl_b32 s56, s26, 1
    s_add_u32 s55, s55, s56
    s_lshl_b32 s56, s55, 10
    v_lshlrev_b32 v3, 5, v0                 ; lane*32 : (l>>5)*1024 + (l&31)*32
    v_and_b32 v4, 0x3ff, v3
    """)
    vm.op("buffer_load_dwordx4 v[28:31], v3, s[8:11], s56 offen")
    vm.op("buffer_load_dwordx4 v[32:35], v3, s[8:11], s56 offen offset:16")
    vm.op("global_load_dwordx4 v[36:39], v4, s[52:53]")
    m_gate = vm.op("global_load_dwordx4 v[40:43], v4, s[52:53] offset:16")
    a(f"""
    v_lshrrev_b32 v5, 2, v0
    v_lshlrev_b32 v5, 10, v5
    v_and_b32 v6, 3, v0
    v_lshl_add_u32 v5, v6, 4, v5
    s_lshl_b32 s56, s27, 15
    s_lshl_b32 s57, s24, 6
    s_add_u32 s56, s56, s57
    s_add_u32 s57, s56, 16384
    s_lshl_b32 s58, s26, 11
    s_add_u32 s58, s58, {UTS}
    s_mov_b32 m0, s58
    """)
    vm.op("buffer_load_dwordx4 v5, s[8:11], s56 offen lds")
    a("s_add_u32 m0, s58, 1024")
    m_ut = vm.op("buffer_load_dwordx4 v5, s[8:11], s57 offen lds")
    a(f"""
    s_lshl_b32 s59, s26, 13
    s_add_u32 s59, s59, {KGS}
    v_bfe_u32 v1, v0, 1, 2
    v_lshlrev_b32 v1, 4, v1
    v_lshl_add_u32 v1, v0, 6, v1
    v_add_u32 v14, s59, v1
    v_xor_b32 v15, 16, v14
    v_xor_b32 v16, 32, v14
    v_xor_b32 v17, 48, v14
    v_bfe_u32 v1, v0, 3, 1
    v_lshlrev_b32 v1, 4, v1
    v_xor_b32 v18, v13, v1
    v_add_u32 v18, s59, v18
    v_xor_b32 v19, 32, v18
    v_add_u32 v19, 256, v19
    s_barrier
    """)
    vm.wait(m_par)
    a(f"""
    v_mul_f32 v26, {f32(LOG2E)}, v26
    v_exp_f32 v26, v26
    v_cvt_pk_bf16_f32 v26, v26, v26
    v_lshlrev_b32 v26, 16, v26
    v_mul_f32 v20, v26, v20
    v_mul_f32 v21, v26, v21
    v_mul_f32 v20, {f32(LOG2E)}, v20
    v_mul_f32 v21, {f32(1/(2*math.pi))}, v21
    """)
    for (z, e) in ((44, 1.0), (46, 8.0), (48, 256.0)):
        a(f"""
        v_mul_f32 v52, {f32(e)}, v20
        v_mul_f32 v53, {f32(e)}, v21
        v_exp_f32 v52, v52
        v_fract_f32 v53, v53
        v_cos_f32 v{z}, v53
        v_sin_f32 v{z+1}, v53
        v_pk_mul_f32 {vr(z,2)}, {vr(z,2)}, v[52:53] op_sel:[0,0] op_sel_hi:[1,0]
        """)
    cmuls(a, [(50, 22, 24)])
    a("v_pk_mul_f32 v[50:51], v[50:51], v[26:27] op_sel:[0,0] op_sel_hi:[1,0]")
    vm.wait(m_gate)
    a("v_mov_b32 v54, 0")
    for k in range(8): a(f"v_dot2_f32_bf16 v54, v{28+k}, v{36+k}, v54\ns_nop 2" if False else f"v_dot2c_f32_bf16 v54, v{28+k}, v{36+k}")
    a("s_nop 2")
    for sh in (1, 2, 4, 8): a(f"v_add_f32_dpp v54, v54, v54 row_shr:{sh} row_mask:0xf bank_mask:0xf bound_ctrl:0")
    a("v_add_f32_dpp v54, v54, v54 row_bcast:15 row_mask:0xa bank_mask:0xf")
    a(f"""
    v_cvt_pk_bf16_f32 v54, v54, v54
    v_lshlrev_b32 v54, 16, v54
    v_mul_f32 v54, {f32(-LOG2E)}, v54
    v_exp_f32 v54, v54
    v_add_f32 v54, 1.0, v54
    v_rcp_f32 v54, v54
    v_cvt_pk_bf16_f32 v54, v54, v54
    v_lshlrev_b32 v54, 16, v54
    v_lshrrev_b32 v55, 5, v0
    v_lshlrev_b32 v55, 2, v55
    s_lshl_b32 s55, s55, 2
    s_add_u32 s55, s55, {GG}
    s_mov_b32 exec_lo, 0x80000000
    s_mov_b32 exec_hi, 0x80000000
    """)
    vm.op("buffer_store_dword v54, v55, s[16:19], s55 offen")
    a("s_mov_b64 exec, -1")
    a("s_barrier")
    dma_chunk(); vm.n += 7; m_c4 = vm.n
    P = lambda j: 64 + 2*j
    a(f"v_mov_b32 v{P(0)}, 1.0\nv_mov_b32 v{P(0)+1}, 0\nv_mov_b32 v{P(1)}, v46\nv_mov_b32 v{P(1)+1}, v47")
    cmuls(a, [(P(2), P(1), P(1))])
    cmuls(a, [(P(3), P(1), P(2)), (P(4), P(2), P(2))])
    cmuls(a, [(P(4+j), P(j), P(4)) for j in (1, 2, 3, 4)])
    cmuls(a, [(P(8+j), P(j), P(8)) for j in range(1, 9)])
    def pack_write(src, neg_im):
        pass
    def wr_chunk(c, srcs, neg_im):
        n = "-" if neg_im else ""
        for k in range(4):
            x, y = srcs[2*k], srcs[2*k+1]
            a(f"v_cvt_pk_bf16_f32 v{56+k}, v{x}, v{y}")
        for k in range(4):
            x, y = srcs[2*k], srcs[2*k+1]
            a(f"v_cvt_pk_bf16_f32 v{60+k}, {n}v{x+1}, {n}v{y+1}")
        a(f"ds_write_b128 v{14+c}, v[56:59]\nds_write_b128 v{14+c}, v[60:63] offset:4096")
    wr_chunk(0, [P(j) for j in range(8)], True)
    wr_chunk(1, [P(j) for j in range(8, 16)], True)
    a("s_barrier")
    dma_chunk(); vm.n += 7; m_c5 = vm.n
    cmuls(a, [(P(16+j), P(j), P(16)) for j in range(1, 16)])
    wr_chunk(2, [P(j) for j in range(16, 24)], True)
    wr_chunk(3, [P(j) for j in range(24, 32)], True)
    a("s_waitcnt lgkmcnt(0)")
    BF = 128
    for s in range(8):
        a(f"ds_read_b64_tr_b16 {vr(BF+4*s,2)}, v18 offset:{s*1024}\nds_read_b64_tr_b16 {vr(BF+4*s+2,2)}, v19 offset:{s*1024}")
    a("s_barrier")
    dma_chunk(); vm.n += 7; m_c6 = vm.n
    T = lambda i: 64 + 2*i
    a(f"v_mov_b32 v{T(0)}, v50\nv_mov_b32 v{T(0)+1}, v51")
    Z = {256: 48, 512: 86, 768: 88, 1024: 90, 1280: 92, 1536: 94, 1792: 96}
    cmuls(a, [(T(1), 50, 44), (82, 44, 44), (T(8), 50, 46), (Z[512], 48, 48)])
    cmuls(a, [(T(2), T(0), 82), (T(3), T(1), 82), (84, 82, 82), (Z[768], Z[512], 48), (Z[1024], Z[512], Z[512])])
    cmuls(a, [(T(4+i), T(i), 84) for i in range(4)] + [(Z[1280], Z[1024], 48), (Z[1536], Z[1024], Z[512]), (Z[1792], Z[1024], Z[768])])
    cols = [0,1,2,3,4,5,6,7, 256,258,260,512, 260,262,264,768, 516,520,1024,1032, 772,776,1536,1544, 1280,1288,0,0, 1792,1800,0,0]
    a("s_waitcnt lgkmcnt(0)")
    wr_chunk(0, [T(i) for i in range(8)], False)
    loc = {i: T(i) for i in range(9)}
    def chunk_vals(c):
        jobs = []; srcs = []; nxt = 98
        for al in cols[8*c:8*c+8]:
            if al not in loc_c:
                loc_c[al] = nxt; jobs.append((nxt, T(al % 256), Z[al - al % 256])); nxt += 2
            srcs.append(loc_c[al])
        cmuls(a, jobs)
        wr_chunk(c, srcs, False)
    loc_c = dict(loc); chunk_vals(1)
    vm.wait(m_c4)
    a("s_barrier")
    dma_chunk(); vm.n += 7; m_c7 = vm.n
    loc_c = dict(loc); chunk_vals(2)
    loc_c = dict(loc); chunk_vals(3)
    a("s_waitcnt lgkmcnt(0)")
    AFr = 64
    for s in range(8):
        a(f"ds_read_b64_tr_b16 {vr(AFr+4*s,2)}, v18 offset:{s*1024}\nds_read_b64_tr_b16 {vr(AFr+4*s+2,2)}, v19 offset:{s*1024}")
    a(f"v_add_u32 v5, s58, v13")
    D = 96
    for s in range(8):
        a(f"s_waitcnt lgkmcnt({14-2*s})")
        a(f"v_mfma_f32_32x32x16_bf16 {vr(D,16)}, {vr(AFr+4*s,4)}, {vr(BF+4*s,4)}, {'0' if s == 0 else vr(D,16)}")
    for i in range(2):
        a(f"ds_read_b64_tr_b16 {vr(28+4*i,2)}, v5 offset:{i*1024}\nds_read_b64_tr_b16 {vr(30+4*i,2)}, v5 offset:{i*1024+256}")
    a(f"""
    v_and_b32 v1, 31, v0
    v_mul_u32_u24 v1, 4608, v1
    v_lshrrev_b32 v2, 5, v0
    v_lshl_add_u32 v1, v2, 4, v1
    s_mul_i32 s56, s24, {32*4608}
    s_lshl_b32 s57, s25, 1
    s_add_u32 s57, s57, s33
    s_mul_i32 s57, s57, 144
    s_add_u32 s56, s56, s57
    s_lshl_b32 s57, s34, 6
    s_add_u32 s56, s56, s57
    s_add_u32 s56, s56, {UT}
    v_lshl_add_u32 v3, v0, 4, s59
    s_waitcnt lgkmcnt(0)
    """)
    vm.wait(m_c5)
    vm.op("buffer_store_dwordx4 v[28:31], v1, s[16:19], s56 offen")
    vm.op("buffer_store_dwordx4 v[32:35], v1, s[16:19], s56 offen offset:32")
    a("s_cmp_eq_u32 s34, 0\ns_cbranch_scc1 KA_h_nowr")
    for q in range(4): a(f"ds_write_b128 v3, {vr(D+4*q,4)} offset:{q*1024}")
    a("s_waitcnt lgkmcnt(0)\nKA_h_nowr:")
    a("s_barrier")
    a("s_cmp_lg_u32 s34, 0\ns_cbranch_scc1 KA_h_skip")
    for q in range(4): a(f"ds_read_b128 {vr(64+4*q,4)}, v3 offset:{8192+q*1024}")
    a(f"""
    v_and_b32 v1, 31, v0
    v_lshlrev_b32 v1, 4, v1                 ; 16*j
    v_lshrrev_b32 v2, 5, v0                 ; hi
    v_lshl_add_u32 v4, v2, 3, v1
    v_sub_u32 v4, {2*2044-512}, v4
    v_lshl_add_u32 v5, v2, 9, v1
    v_sub_u32 v5, {2*1528}, v5              ; seg2
    v_lshl_add_u32 v6, v2, 10, v1
    v_sub_u32 v6, {2*760}, v6               ; seg3 g=1 (g=0: +512)
    v_and_b32 v7, 1, v0
    v_cmp_eq_u32 vcc, 0, v7                 ; even j
    v_cmp_eq_u32 s[60:61], 0, v0
    v_cndmask_b32 v27, 0, v27, s[60:61]
    s_lshl_b32 s56, s35, 12
    s_add_u32 s56, s56, {KS}
    s_waitcnt lgkmcnt(0)
    """)
    for r in range(14): a(f"v_add_f32 v{D+r}, v{D+r}, v{64+r}")
    a(f"v_add_f32 v{D}, v{D}, v27")
    r = lambda k: f"v{D+k}"
    a(f"""
    v_cndmask_b32 v44, {r(11)}, {r(10)}, vcc
    v_cndmask_b32 v45, {r(13)}, {r(12)}, vcc
    v_cvt_pk_bf16_f32 v64, {r(3)}, {r(2)}
    v_cvt_pk_bf16_f32 v65, {r(1)}, {r(0)}
    v_cvt_pk_bf16_f32 v66, {r(6)}, {r(5)}
    v_cvt_pk_bf16_f32 v67, {r(4)}, {r(4)}
    v_cvt_pk_bf16_f32 v68, {r(9)}, {r(9)}
    v_cvt_pk_bf16_f32 v69, {r(8)}, {r(8)}
    v_cvt_pk_bf16_f32 v70, {r(8)}, {r(7)}
    v_cvt_pk_bf16_f32 v71, {r(7)}, {r(7)}
    v_cvt_pk_bf16_f32 v72, {r(11)}, {r(11)}
    v_cvt_pk_bf16_f32 v73, {r(11)}, v44
    v_cvt_pk_bf16_f32 v74, {r(10)}, {r(10)}
    v_mov_b32 v75, v74
    v_cvt_pk_bf16_f32 v76, {r(13)}, {r(13)}
    v_cvt_pk_bf16_f32 v77, {r(13)}, v45
    v_cvt_pk_bf16_f32 v78, {r(12)}, {r(12)}
    v_mov_b32 v79, v78
    KA_h_skip:
    """)
    vm.wait(m_c6)
    a("s_barrier")
    vm.wait(m_c7)
    a("s_barrier")
    a(f"""
    s_cmp_lg_u32 s34, 0
    s_cbranch_scc1 KA_end
    buffer_store_dwordx2 v[64:65], v4, s[16:19], s56 offen offset:512
    buffer_store_dwordx2 v[66:67], v4, s[16:19], s56 offen
    buffer_store_dwordx4 v[68:71], v5, s[16:19], s56 offen
    buffer_store_dwordx4 v[72:75], v6, s[16:19], s56 offen offset:512
    buffer_store_dwordx4 v[76:79], v6, s[16:19], s56 offen
    KA_end:
    s_endpgm
    """)
    return kd("ka_kernel", 160, 64), "; @launch kernel=ka_kernel grid=(256,1,1) block=(512,1,1) lds=155648"

def kernel_b(a):
    SS = 131072
    UL = SS
    RL = SS + 10240
    LDS = SS + 10240 + 2*8576
    kernel_begin(a, "kb_kernel")
    a(f"""
    s_cmp_ge_u32 s2, 256
    s_cbranch_scc1 KB_end
    {"s_memrealtime s[64:65]" if STAMP else ""}
    s_load_dwordx2 s[20:21], s[0:1], 120
    v_lshrrev_b32 v1, 6, v0
    v_and_b32 v0, 63, v0
    v_readfirstlane_b32 s3, v1
    s_and_b32 s22, s2, 7
    s_lshl_b32 s22, s22, 2
    s_bfe_u32 s23, s2, 0x20003
    s_add_u32 s22, s22, s23          ; head
    s_lshr_b32 s23, s2, 5            ; qb
    v_lshlrev_b32 v1, 4, v0          ; lane*16
    s_lshl_b32 s24, s22, 17
    s_add_u32 s24, s24, {KV}
    s_waitcnt lgkmcnt(0)
    """)
    srd(a, 16, 20, WS_BYTES)
    a("s_cmp_ge_u32 s3, 8\ns_cbranch_scc1 KB_conv")
    Q, KFr, V0, V1 = 4, 8, 12, [16, 20]
    S = [32, 48]; O = 64; NM = 80
    a(f"""
    s_lshl_b32 s25, s23, 3
    s_add_u32 s25, s25, s3
    s_lshl_b32 s26, s22, 16
    s_lshl_b32 s27, s25, 10
    s_add_u32 s26, s26, s27
    buffer_load_dwordx4 {vr(Q,4)}, v1, s[16:19], s26 offen
    s_lshl_b32 s27, s3, 10
    s_add_u32 s28, s24, s27
    s_mov_b32 m0, s27
    """)
    for k in range(4):
        a(f"buffer_load_dwordx4 v1, s[16:19], s28 offen lds")
        if k < 3: a("s_add_u32 s28, s28, 8192\ns_add_u32 m0, m0, 8192")
    a(f"""
    v_and_b32 v2, 31, v0
    v_lshlrev_b32 v2, 2, v2
    s_lshl_b32 s27, s25, 7
    s_add_u32 s27, s27, {GG}
    buffer_load_dword v3, v2, s[16:19], s27 offen
    v_mov_b32 v24, 0xdddd
    s_mov_b32 s30, 0x0000ffff
    s_mov_b32 s31, 0x0000ffff
    v_mov_b32 v25, 0x3f803f80
    """)
    for r in range(V0, V0+12): a(f"v_mov_b32 v{r}, v25")
    a(f"""
    s_mov_b32 s32, 1
    s_mov_b32 s33, 3
    {"s_memrealtime s[66:67]" if STAMP else ""}
    s_waitcnt vmcnt(1)
    {"s_memrealtime s[68:69]" if STAMP else ""}
    s_barrier
    {"s_memrealtime s[70:71]" if STAMP else ""}
    KB_maxpass:
    v_mov_b32 v26, v1
    v_mov_b32 v27, 0xff800000
    KB_maxloop:
    ds_read_b128 {vr(KFr,4)}, v26
    v_add_u32 v26, 2048, v26
    s_waitcnt lgkmcnt(0)
    v_mfma_f32_32x32x16_bf16 {vr(S[0],16)}, {vr(KFr,4)}, {vr(Q,4)}, 0
    s_sub_u32 s32, s32, 1
    s_cmp_lg_u32 s32, 0
    """)
    for k in range(8): a(f"v_max3_f32 v27, v27, v{S[0]+2*k}, v{S[0]+2*k+1}")
    a(f"""
    s_cbranch_scc1 KB_maxloop
    ds_read_b128 {vr(KFr,4)}, v1
    v_mov_b32 v28, v27
    v_permlane32_swap_b32 v27, v28
    v_max_f32 v27, v27, v28
    v_sub_f32 v27, 0, v27
    """)
    for r in range(16): a(f"v_mov_b32 v{NM+r}, v27")
    for r in range(16): a(f"v_mov_b32 v{O+r}, 0")
    for r in range(8, 16): a(f"v_mov_b32 v{S[1]+r}, 0")
    a(f"""
    v_mov_b32 v26, v1
    s_waitcnt lgkmcnt(0)
    v_mfma_f32_32x32x16_bf16 {vr(S[0],16)}, {vr(KFr,4)}, {vr(Q,4)}, {vr(NM,16)}
    ds_read_b128 {vr(KFr,4)}, v26 offset:2048
    s_mov_b64 exec, s[30:31]
    ds_read_b128 {vr(V0,4)}, v26 offset:1024
    ds_read_b128 {vr(V1[0],4)}, v26 offset:1280
    s_mov_b64 exec, -1
    s_mov_b32 s34, 0
    s_nop 7
    KB_loop:
    s_cmp_lg_u32 s34, s33
    s_cbranch_scc1 KB_nobar
    {"s_memrealtime s[72:73]" if STAMP else ""}
    s_barrier
    {"s_memrealtime s[74:75]" if STAMP else ""}
    KB_nobar:
    """)
    UN = 4
    for i in range(UN):
        cur, nxt = S[i & 1], S[(i+1) & 1]
        e = [f"v_exp_f32 v{cur+k}, v{cur+k}" for k in range(16)]
        for x in e[0:2]: a(x)
        a(f"v_smfmac_f32_32x32x32_bf16 {vr(O,16)}, {vr(V1[(i+1)&1],4)}, {vr(nxt+8,8)}, v24")
        for x in e[2:7]: a(x)
        a("s_waitcnt lgkmcnt(0)")
        a(f"v_mfma_f32_32x32x16_bf16 {vr(nxt,16)}, {vr(KFr,4)}, {vr(Q,4)}, {vr(NM,16)}")
        for x in e[7:12]: a(x)
        a(f"v_smfmac_f32_32x32x32_bf16 {vr(O,16)}, {vr(V0,4)}, {vr(cur,8)}, v24")
        a(f"ds_read_b128 {vr(KFr,4)}, v26 offset:{(i+2)*2048}")
        a("s_mov_b64 exec, s[30:31]")
        a(f"ds_read_b128 {vr(V0,4)}, v26 offset:{(i+1)*2048+1024}")
        a(f"ds_read_b128 {vr(V1[(i+1)&1],4)}, v26 offset:{(i+1)*2048+1280}")
        a("s_mov_b64 exec, -1")
        for x in e[12:16]: a(x)
    a(f"""
    v_add_u32 v26, {UN*2048}, v26
    s_add_u32 s34, s34, 1
    s_cmp_lt_u32 s34, {64//UN}
    s_cbranch_scc1 KB_loop
    v_smfmac_f32_32x32x32_bf16 {vr(O,16)}, {vr(V1[1],4)}, {vr(S[1]+8,8)}, v24
    s_waitcnt vmcnt(0) lgkmcnt(0)
    v_rcp_f32 v28, v{O+8}
    v_mov_b32 v29, 0
    v_mul_f32 v28, v28, v3
    """)
    for r in range(8): a(f"v_mul_f32 v{S[0]+r}, v{O+r}, v28")
    for r in range(8): a(f"v_fma_f32 v29, v{S[0]+r}, 0, v29")
    a(f"""
    v_cmp_u_f32 vcc, v29, v29
    s_mov_b32 s36, {f32(2.0**64)}
    v_cmp_nge_f32 s[38:39], s36, v{O+8}
    s_or_b64 vcc, vcc, s[38:39]
    s_cmp_eq_u32 s33, 3
    s_cselect_b64 vcc, vcc, 0
    s_cbranch_vccz KB_store
    s_mov_b32 s32, 64
    s_mov_b32 s33, 1000
    """)
    for r in range(V0, V0+12): a(f"v_mov_b32 v{r}, v25")
    a("s_branch KB_maxpass\nKB_store:")
    for r in range(4): a(f"v_cvt_pk_bf16_f32 v{S[1]+r}, v{S[0]+2*r}, v{S[0]+2*r+1}")
    a(f"""
    s_lshl_b32 s26, s25, 15
    s_lshl_b32 s27, s22, 10
    s_add_u32 s26, s26, s27
    s_add_u32 s26, s26, {OF}
    buffer_store_dwordx4 {vr(S[1],4)}, v1, s[16:19], s26 offen
    """)
    stamp(a, 6)
    if STAMP: a("s_waitcnt vmcnt(0)")
    stamp_flush(a, 1, 7)
    a("s_endpgm")
    a(f"""
    KB_conv:
    s_sub_u32 s3, s3, 8
    s_lshr_b32 s25, s3, 1            ; chl
    s_and_b32 s26, s3, 1             ; p
    s_lshl_b32 s27, s2, 1
    s_add_u32 s27, s27, s25          ; channel
    s_mul_i32 s28, s25, 8576
    s_add_u32 s28, s28, {RL}
    s_mul_i32 s29, s25, 5120
    s_add_u32 s29, s29, {UL}
    s_lshl_b32 s30, s26, 11          ; p*2048
    s_lshl_b32 s31, s27, 12
    s_add_u32 s31, s31, {KS}
    s_add_u32 s31, s31, s30
    s_add_u32 m0, s28, s30
    s_mul_i32 s32, s27, 4608
    buffer_load_dwordx4 v1, s[16:19], s31 offen lds
    buffer_load_dwordx4 v1, s[16:19], s31 offen offset:1024 lds
    s_add_u32 s32, s32, {UT}
    s_add_u32 s32, s32, s30
    s_add_u32 m0, s29, s30
    s_nop 0
    buffer_load_dwordx4 v1, s[16:19], s32 offen lds
    buffer_load_dwordx4 v1, s[16:19], s32 offen offset:1024 lds
    buffer_load_dwordx4 v1, s[16:19], s32 offen offset:2048 lds
    s_lshl_b32 s33, s3, 12
    s_add_u32 s33, s33, 32768
    s_add_u32 s34, s33, s24
    s_mov_b32 s35, 0
    KB_bulk:
    s_mov_b32 m0, s33
    s_add_u32 s33, s33, 16384
    """)
    for k in range(4): a(f"buffer_load_dwordx4 v1, s[16:19], s34 offen offset:{k*1024} lds")
    a(f"""
    s_add_u32 s34, s34, 16384
    s_add_u32 s35, s35, 1
    s_cmp_lg_u32 s35, 3
    s_cbranch_scc1 KB_bulk2
    v_mov_b32 v4, 0
    v_lshlrev_b32 v2, 2, v0
    v_add_u32 v2, s28, v2
    s_mov_b32 exec_hi, 0
    ds_write_b32 v2, v4 offset:4096
    ds_write_b32 v2, v4 offset:{4288+4096}
    s_mov_b64 exec, -1
    s_waitcnt vmcnt(12) lgkmcnt(0)
    s_barrier
    KB_bulk2:
    s_cmp_lt_u32 s35, 6
    s_cbranch_scc1 KB_bulk
    v_add_u32 v2, s28, v1
    v_add_u32 v2, s30, v2
    ds_read_b128 v[8:11], v2 offset:2
    ds_read_b128 v[12:15], v2 offset:1026
    ; addresses
    v_and_b32 v3, 31, v0             ; b / n
    v_lshrrev_b32 v4, 5, v0          ; hi
    s_lshl_b32 s36, s26, 5
    s_sub_u32 s36, 63, s36
    v_lshl_add_u32 v5, v4, 3, s36
    v_sub_u32 v5, v5, v3             ; i0
    v_and_b32 v6, 1, v5
    v_lshrrev_b32 v5, 1, v5
    v_lshlrev_b32 v5, 2, v5
    v_mul_u32_u24 v6, 4288, v6
    v_add3_u32 v5, v5, v6, s28       ; A addr
    v_mul_u32_u24 v6, 144, v3
    v_lshl_add_u32 v6, v4, 4, v6
    s_sub_u32 s36, s29, {31*144}
    v_add_u32 v6, s36, v6            ; B addr
    s_waitcnt lgkmcnt(0)
    ds_write_b128 v2, v[8:11] offset:4288
    ds_write_b128 v2, v[12:15] offset:{4288+1024}
    """)
    for r in range(32, 64): a(f"v_mov_b32 v{r}, 0")
    a(f"""
    s_mov_b32 s35, 31
    {"s_memrealtime s[66:67]" if STAMP else ""}
    s_waitcnt vmcnt(0) lgkmcnt(0)
    {"s_memrealtime s[68:69]" if STAMP else ""}
    s_barrier
    {"s_memrealtime s[70:71]" if STAMP else ""}
    KB_cloop:
    s_lshl_b32 exec_lo, -1, s35
    s_lshl_b32 exec_hi, -1, s35
    """)
    for s in range(4): a(f"ds_read_b128 {vr(32+4*s,4)}, v6 offset:{32*s}")
    a("s_mov_b64 exec, -1")
    for s in range(4):
        a(f"ds_read2_b32 {vr(16+4*s,2)}, v5 offset0:{8*s} offset1:{8*s+1}")
        a(f"ds_read2_b32 {vr(18+4*s,2)}, v5 offset0:{8*s+2} offset1:{8*s+3}")
    a("v_add_u32 v5, 128, v5\nv_add_u32 v6, 144, v6")
    for s in range(4):
        a(f"s_waitcnt lgkmcnt({6-2*s})")
        a(f"v_mfma_f32_32x32x16_bf16 v[48:63], {vr(16+4*s,4)}, {vr(32+4*s,4)}, v[48:63]")
    a(f"""
    s_sub_u32 s35, s35, 1
    s_cmp_ge_i32 s35, 0
    s_cbranch_scc1 KB_cloop
    v_lshlrev_b32 v3, 7, v3
    v_lshl_add_u32 v3, v4, 4, v3     ; n*128 + hi*16
    s_lshl_b32 s31, s27, 12
    s_lshl_b32 s32, s26, 6
    s_add_u32 s31, s31, s32
    s_add_u32 s31, s31, {BT}
    """)
    for r in range(8): a(f"v_cvt_pk_bf16_f32 v{16+r}, v{48+2*r}, v{49+2*r}")
    a(f"""
    buffer_store_dwordx4 v[16:19], v3, s[16:19], s31 offen
    buffer_store_dwordx4 v[20:23], v3, s[16:19], s31 offen offset:32
    s_add_u32 s3, s3, 8
    """)
    stamp_flush(a, 1, 4)
    a("KB_end:\ns_endpgm")
    return kd("kb_kernel", 96, 48), f"; @launch kernel=kb_kernel grid=(256,1,1) block=(768,1,1) lds={LDS}"

def kernel_c(a):
    kernel_begin(a, "kc_kernel")
    a(f"""
    s_cmp_ge_u32 s2, 256
    s_cbranch_scc1 KC_end
    {"s_memrealtime s[64:65]" if STAMP else ""}
    s_load_dwordx2 s[4:5], s[0:1], 16
    s_load_dwordx2 s[6:7], s[0:1], 104
    s_load_dwordx2 s[20:21], s[0:1], 120
    v_lshrrev_b32 v1, 6, v0
    v_and_b32 v0, 63, v0
    v_readfirstlane_b32 s3, v1
    s_and_b32 s22, s2, 7
    s_lshl_b32 s22, s22, 2
    s_bfe_u32 s23, s2, 0x20003
    s_add_u32 s22, s22, s23
    s_lshr_b32 s23, s2, 5
    s_and_b32 s24, s3, 1             ; wt
    s_lshr_b32 s25, s3, 1            ; wc
    s_lshl_b32 s26, s22, 1
    s_add_u32 s26, s26, s24          ; t tile
    s_lshl_b32 s27, s23, 1
    s_add_u32 s27, s27, s25
    v_lshlrev_b32 v1, 4, v0
    v_lshrrev_b32 v2, 2, v0
    v_lshlrev_b32 v2, 10, v2
    v_and_b32 v3, 3, v0
    v_lshl_add_u32 v2, v3, 4, v2
    s_lshl_b32 s28, s24, 18
    s_lshl_b32 s29, s27, 6
    s_add_u32 s28, s28, s29
    s_lshl_b32 s29, s25, 15
    s_lshl_b32 s30, s24, 14
    s_add_u32 s29, s29, s30
    s_waitcnt lgkmcnt(0)
    """)
    srd(a, 8, 4, 524288)
    srd(a, 12, 6, 2097152)
    srd(a, 16, 20, WS_BYTES)
    a(f"""
    s_mov_b32 m0, s29
    s_mov_b32 s30, 16
    KC_dma:
    buffer_load_dwordx4 v2, s[8:11], s28 offen lds
    s_add_u32 s28, s28, 16384
    s_add_u32 m0, m0, 1024
    s_sub_u32 s30, s30, 1
    s_cmp_lg_u32 s30, 0
    s_cbranch_scc1 KC_dma
    v_and_b32 v4, 31, v0
    v_lshrrev_b32 v5, 5, v0
    v_lshlrev_b32 v6, 2, v4
    s_lshl_b32 s30, s26, 7
    s_add_u32 s30, s30, {GG}
    buffer_load_dword v7, v6, s[16:19], s30 offen
    v_lshlrev_b32 v6, 12, v4
    v_lshl_add_u32 v6, v5, 4, v6     ; d*4096 + hi*16
    s_lshl_b32 s30, s27, 17
    s_lshl_b32 s31, s26, 6
    s_add_u32 s30, s30, s31
    s_add_u32 s30, s30, {BT}
    buffer_load_dwordx4 v[8:11], v6, s[16:19], s30 offen
    buffer_load_dwordx4 v[12:15], v6, s[16:19], s30 offen offset:32
    s_lshl_b32 s30, s26, 15
    s_add_u32 s30, s30, {OF}
    """)
    OFr = 64
    for h in range(32):
        if h % 4 == 0 and h: a("s_add_u32 s30, s30, 4096")
        a(f"buffer_load_dwordx4 {vr(OFr+4*h,4)}, v1, s[16:19], s30 offen offset:{(h%4)*1024}")
    a(f"""
    v_lshlrev_b32 v2, 8, v5
    v_bfe_u32 v3, v0, 2, 2
    v_lshl_add_u32 v2, v3, 6, v2
    v_bfe_u32 v3, v0, 4, 1
    v_lshl_add_u32 v2, v3, 5, v2
    v_and_b32 v3, 3, v0
    v_lshl_add_u32 v2, v3, 3, v2
    s_lshl_b32 s29, s25, 15
    v_add_u32 v2, s29, v2
    v_lshrrev_b32 v3, 3, v4
    v_bfe_u32 v6, v4, 1, 1
    v_lshl_add_u32 v3, v3, 1, v6
    v_bfe_u32 v6, v4, 2, 1
    v_xor_b32 v6, v6, v5
    v_lshl_add_u32 v3, v6, 4, v3
    v_and_b32 v6, 1, v4
    v_lshlrev_b32 v6, 4, v6
    {"s_memrealtime s[66:67]" if STAMP else ""}
    s_waitcnt vmcnt(34)
    {"s_memrealtime s[68:69]" if STAMP else ""}
    v_sub_f32 v7, 1.0, v7
    v_cvt_pk_bf16_f32 v7, v7, v7
    v_and_b32 v7, 0xffff, v7
    v_lshlrev_b32 v7, v6, v7
    """)
    for k in range(8):
        a(f"v_cmp_eq_u32 vcc, {k}, v3\nv_cndmask_b32 v{16+k}, 0, v7, vcc")
    a(f"""
    s_barrier
    s_waitcnt vmcnt(32)
    v_mfma_f32_32x32x16_bf16 v[48:63], v[8:11], v[16:19], 0
    v_mfma_f32_32x32x16_bf16 v[48:63], v[12:15], v[20:23], v[48:63]
    """)
    NB = 4
    def rd(h):
        f = 24 + 4*(h % NB)
        a(f"ds_read_b64_tr_b16 {vr(f,2)}, v2 offset:{h*1024}\nds_read_b64_tr_b16 {vr(f+2,2)}, v2 offset:{h*1024+512}")
    for h in range(NB-1): rd(h)
    for h in range(32):
        if h + NB - 1 < 32: rd(h + NB - 1)
        left = min(NB-1, 31-h)
        a(f"s_waitcnt vmcnt({31-h}) lgkmcnt({2*left})")
        a(f"v_mfma_f32_32x32x16_bf16 v[48:63], {vr(24+4*(h%NB),4)}, {vr(OFr+4*h,4)}, v[48:63]")
    a(f"""
    {"s_memrealtime s[70:71]" if STAMP else ""}
    v_lshlrev_b32 v1, 10, v4
    v_lshl_add_u32 v1, v5, 4, v1     ; t*1024 + hi*16
    s_lshl_b32 s30, s26, 15
    s_lshl_b32 s31, s27, 6
    s_add_u32 s30, s30, s31
    """)
    for r in range(8): a(f"v_cvt_pk_bf16_f32 v{8+r}, v{48+2*r}, v{49+2*r}")
    a(f"""
    v_permlane32_swap_b32 v8, v10
    v_permlane32_swap_b32 v9, v11
    v_permlane32_swap_b32 v12, v14
    v_permlane32_swap_b32 v13, v15
    buffer_store_dwordx4 v[8:11], v1, s[12:15], s30 offen
    buffer_store_dwordx4 v[12:15], v1, s[12:15], s30 offen offset:32
    """)
    if STAMP: a("s_waitcnt vmcnt(0)")
    stamp_flush(a, 2, 4)
    a("KC_end:\ns_endpgm")
    return kd("kc_kernel", 192, 40), "; @launch kernel=kc_kernel grid=(256,1,1) block=(256,1,1) lds=65536"

def main(out):
    a = Asm()
    parts = [kernel_a(a), kernel_b(a), kernel_c(a)]
    bad = a.check_branches()
    for b in bad: print("BRANCH HAZARD:", b)
    head = "; generated by work/gen/gen.py\n" + "\n".join(p[1] for p in parts) + '\n.amdgcn_target "amdgcn-amd-amdhsa--gfx950"\n.text\n'
    tail = '.section .rodata,"a"\n' + "".join(".p2align 6\n" + p[0] for p in parts)
    open(out, "w").write(head + a.text() + tail)

if __name__ == "__main__":
    if "--stamp" in sys.argv:
        STAMP = True; sys.argv.remove("--stamp")
    main(sys.argv[1] if len(sys.argv) > 1 else f"cdna_kernels/{NAME}.s")
```

```python
import sys, struct, math
from asmlib import Asm

NAME = "gated_mix__softmax_full_mha__ssm_conv_s4__prompt"
def f32(x): return "0x%08x" % struct.unpack("<I", struct.pack("<f", x))[0]
LOG2E = 1.4426950408889634

QF, KV, OF, BT, KS, UT, GG = 0x000000, 0x200000, 0x600000, 0x800000, 0xA00000, 0xC00000, 0xF00000
WS_BYTES = 0x1000000

def vr(b, n): return f"v[{b}:{b+n-1}]"
def sr(b, n): return f"s[{b}:{b+n-1}]"

def srd(a, d, base, nbytes):
    a(f"s_mov_b32 s{d}, s{base}\ns_mov_b32 s{d+1}, s{base+1}\ns_mov_b32 s{d+2}, {hex(nbytes)}\ns_mov_b32 s{d+3}, 0x00020000")

def kernel_begin(a, name):
    a(f".globl {name}\n.p2align 8\n.type {name},@function\n{name}:")

def kd(name, vgpr, sgpr):
    acc = (vgpr + 3) // 4 * 4
    if STAMP: sgpr = 96
    return f""".amdhsa_kernel {name}
  .amdhsa_next_free_vgpr {vgpr}
  .amdhsa_next_free_sgpr {sgpr}
  .amdhsa_accum_offset {acc}
  .amdhsa_group_segment_fixed_size 0
  .amdhsa_kernarg_size 128
  .amdhsa_user_sgpr_count 2
  .amdhsa_user_sgpr_kernarg_segment_ptr 1
  .amdhsa_system_sgpr_workgroup_id_x 1
.end_amdhsa_kernel
"""

STAMP = False
OPT = {}
ST = 0xF80000
def stamp(a, k):
    if STAMP: a(f"s_memrealtime s[{64+2*k}:{65+2*k}]")
def stamp_flush(a, kern, n, wave="s3"):
    if not STAMP: return
    a(f"s_memrealtime s[{64+2*n}:{65+2*n}]")
    a(f"s_lshl_b32 s90, s2, 9\ns_lshl_b32 s91, {wave}, 5\ns_add_u32 s90, s90, s91\ns_add_u32 s90, s90, {ST + kern*0x20000}\ns_waitcnt lgkmcnt(0)\ns_mov_b64 exec, 1\nv_mov_b32 v0, 0")
    for k in range(n+1):
        a(f"v_mov_b32 v1, s{64+2*k}\nbuffer_store_dword v1, v0, s[16:19], s90 offen offset:{4*k}")

class VM:
    def __init__(self, a): self.a = a; self.n = 0
    def op(self, text, k=1):
        self.a(text); self.n += k; return self.n
    def wait(self, mark):
        left = self.n - mark
        assert 0 <= left <= 63, left
        self.a(f"s_waitcnt vmcnt({left})")

def cmul(a, d, x, y, t, conj_y=False):
    if not conj_y:
        a(f"v_pk_mul_f32 {vr(t,2)}, {vr(x,2)}, {vr(y,2)} op_sel:[0,0] op_sel_hi:[0,1]")
        return f"v_pk_fma_f32 {vr(d,2)}, {vr(x,2)}, {vr(y,2)}, {vr(t,2)} op_sel:[1,1,0] op_sel_hi:[1,0,1] neg_lo:[1,0,0]"
    else:
        a(f"v_pk_mul_f32 {vr(t,2)}, {vr(x,2)}, {vr(y,2)} op_sel:[0,0] op_sel_hi:[0,1] neg_hi:[0,1]")
        return f"v_pk_fma_f32 {vr(d,2)}, {vr(x,2)}, {vr(y,2)}, {vr(t,2)} op_sel:[1,1,0] op_sel_hi:[1,0,1]"

def cmuls(a, jobs):
    second = [cmul(a, d, x, y, d) for (d, x, y) in jobs]
    for s in second: a(s)

def kernel_a(a):
    XRING, WRING, UTS, KGS = 0, 65536, 114688, 122880
    kernel_begin(a, "ka_kernel")
    a(f"""
    s_cmp_ge_u32 s2, 256
    s_cbranch_scc1 KA_end
    {"s_memrealtime s[64:65]" if STAMP else ""}
    s_load_dwordx4 s[4:7], s[0:1], 0
    s_load_dwordx2 s[20:21], s[0:1], 120
    s_load_dwordx8 s[36:43], s[0:1], 32
    s_load_dwordx8 s[44:51], s[0:1], 64
    s_load_dwordx2 s[52:53], s[0:1], 96
    v_lshrrev_b32 v1, 6, v0
    v_and_b32 v0, 63, v0
    v_readfirstlane_b32 s3, v1
    s_and_b32 s22, s2, 7
    s_lshr_b32 s23, s2, 3
    s_and_b32 s24, s22, 1
    s_lshl_b32 s24, s24, 3
    s_and_b32 s25, s23, 7
    s_add_u32 s24, s24, s25          ; hp
    s_lshr_b32 s25, s22, 1
    s_lshl_b32 s25, s25, 2
    s_lshr_b32 s26, s23, 3
    s_add_u32 s25, s25, s26          ; tb
    s_and_b32 s26, s3, 3             ; w4
    s_lshl_b32 s27, s25, 2
    s_add_u32 s27, s27, s26
    s_lshl_b32 s28, s27, 15
    s_lshl_b32 s29, s26, 12          ; sXl = w4*4096
    s_mul_i32 s30, s26, 49152        ; 16*3072*w4
    s_lshl_b32 s31, s24, 6
    s_add_u32 s30, s30, s31          ; sWo
    s_mul_i32 s31, s26, 3072
    s_add_u32 s31, s31, {WRING}      ; sWl
    v_lshrrev_b32 v1, 3, v0
    v_lshlrev_b32 v2, 10, v1         ; (l>>3)*1024
    v_and_b32 v3, 7, v0
    v_lshrrev_b32 v4, 4, v0
    v_xor_b32 v3, v3, v4
    v_lshl_add_u32 v8, v3, 4, v2     ; i=0
    v_xor_b32 v9, 64, v8
    v_add_u32 v9, {8192-1024}, v9    ; i=1
    v_add_u32 v10, {2*(8192-1024)}, v8
    v_add_u32 v11, {2*(8192-1024)}, v9
    ; W voffset
    v_lshrrev_b32 v1, 2, v0
    v_mul_u32_u24 v2, 3072, v1
    v_and_b32 v3, 3, v0
    v_lshl_add_u32 v12, v3, 4, v2
    v_lshrrev_b32 v1, 5, v0
    v_lshlrev_b32 v1, 9, v1
    v_bfe_u32 v2, v0, 2, 2
    v_lshl_add_u32 v1, v2, 6, v1
    v_bfe_u32 v2, v0, 4, 1
    v_lshl_add_u32 v1, v2, 5, v1
    v_lshl_add_u32 v13, v3, 3, v1
    s_waitcnt lgkmcnt(0)
    """)
    srd(a, 8, 4, 2097152)
    srd(a, 12, 6, 1572864)
    srd(a, 16, 20, WS_BYTES)

    def dma_chunk():
        a("s_mov_b32 m0, s29")
        for i in range(4):
            a(f"buffer_load_dwordx4 v{8+i}, s[8:11], s28 offen offset:{i*1024} lds")
        a("s_mov_b32 m0, s31")
        for m in range(3):
            a(f"buffer_load_dwordx4 v12, s[12:15], s30 offen offset:{m*1024} lds")
        a("s_add_u32 s28, s28, 128\ns_add_u32 s29, s29, 16384\ns_add_u32 s30, s30, 196608\ns_add_u32 s31, s31, 12288")

    a("s_cmp_ge_u32 s3, 4\ns_cbranch_scc1 KA_helper")
    a("s_mov_b32 s32, 4\nKA_dma0:")
    dma_chunk()
    a("s_sub_u32 s32, s32, 1\ns_cmp_lg_u32 s32, 0\ns_cbranch_scc1 KA_dma0")
    a(f"""
    v_and_b32 v1, 31, v0
    v_lshrrev_b32 v2, 5, v0
    v_bfe_u32 v3, v0, 1, 3
    v_xor_b32 v2, v2, v3
    v_lshlrev_b32 v1, 7, v1
    v_lshl_add_u32 v1, v2, 4, v1
    s_lshl_b32 s33, s26, 12
    v_add_u32 v14, s33, v1
    v_xor_b32 v15, 32, v14
    v_xor_b32 v16, 64, v14
    v_xor_b32 v17, 96, v14
    v_add_u32 v18, {WRING}, v13
    """)
    F = [20, 36]
    AQ, AK, AV = 64, 80, 96
    for r in range(64, 112): a(f"v_mov_b32 v{r}, 0")
    def rd(f, slot, s):
        a(f"ds_read_b128 {vr(f,4)}, v{14+s} offset:{slot*16384}")
        for m in range(3):
            o = slot*12288 + s*3072 + m*1024
            a(f"ds_read_b64_tr_b16 {vr(f+4+4*m,2)}, v18 offset:{o}")
            a(f"ds_read_b64_tr_b16 {vr(f+6+4*m,2)}, v18 offset:{o+256}")
    def mm(f):
        a(f"v_mfma_f32_32x32x16_bf16 {vr(AQ,16)}, {vr(f+4,4)}, {vr(f,4)}, {vr(AQ,16)}")
        a(f"v_mfma_f32_32x32x16_bf16 {vr(AK,16)}, {vr(f+8,4)}, {vr(f,4)}, {vr(AK,16)}")
        a(f"v_mfma_f32_32x32x16_bf16 {vr(AV,16)}, {vr(f,4)}, {vr(f+12,4)}, {vr(AV,16)}")
    stamp(a, 1)
    a("s_waitcnt vmcnt(21)\ns_barrier")
    stamp(a, 2)
    rd(F[0], 0, 0)
    a("s_mov_b32 s32, 0\nKA_loop:")
    for slot in range(4):
        rd(F[1], slot, 1); a("s_waitcnt lgkmcnt(7)"); mm(F[0])
        rd(F[0], slot, 2); a("s_waitcnt lgkmcnt(7)"); mm(F[1])
        rd(F[1], slot, 3); a("s_waitcnt lgkmcnt(7)"); mm(F[0])
        a(f"s_waitcnt vmcnt({max(0, 14-7*slot)}) lgkmcnt(0)")
        if slot == 3:
            a("s_cmp_lg_u32 s32, 0\ns_cbranch_scc1 KA_last")
        a("s_barrier")
        rd(F[0], (slot+1) % 4, 0)
        mm(F[1])
    stamp(a, 3)
    a("s_mov_b32 s32, 1\ns_branch KA_loop\nKA_last:")
    stamp(a, 4)
    mm(F[1])
    a(f"""
    v_lshlrev_b32 v1, 4, v0                 ; Q voff
    v_and_b32 v2, 0x33, v0
    v_bfe_u32 v3, v0, 2, 1
    v_lshl_add_u32 v2, v3, 3, v2
    v_bfe_u32 v3, v0, 3, 1
    v_lshl_add_u32 v2, v3, 2, v2
    v_lshlrev_b32 v2, 4, v2
    v_and_b32 v3, 0x2f, v0
    v_lshlrev_b32 v3, 4, v3
    v_bfe_u32 v4, v0, 4, 1
    v_lshl_add_u32 v3, v4, 17, v3
    s_lshl_b32 s33, s24, 17
    s_lshl_b32 s34, s27, 10
    s_add_u32 s33, s33, s34
    s_add_u32 s34, s33, 65536
    s_lshl_b32 s35, s33, 1
    s_add_u32 s35, s35, {KV}
    s_add_u32 s36, s35, 131072
    s_mov_b32 s37, {f32(0.25*LOG2E)}
    """)
    for r in range(16): a(f"v_mul_f32 v{AQ+r}, s37, v{AQ+r}")
    for base, out in ((AQ, 20), (AK, 28), (AV, 36)):
        for r in range(8): a(f"v_cvt_pk_bf16_f32 v{out+r}, v{base+2*r}, v{base+2*r+1}")
    a(f"""
    buffer_store_dwordx4 v[20:23], v1, s[16:19], s33 offen
    buffer_store_dwordx4 v[24:27], v1, s[16:19], s34 offen
    buffer_store_dwordx4 v[28:31], v2, s[16:19], s35 offen
    buffer_store_dwordx4 v[32:35], v2, s[16:19], s36 offen
    buffer_store_dwordx4 v[36:39], v3, s[16:19], s35 offen offset:1024
    buffer_store_dwordx4 v[40:43], v3, s[16:19], s35 offen offset:1280
    """)
    if STAMP: a("s_waitcnt vmcnt(0)")
    stamp_flush(a, 0, 5)
    a("s_endpgm")
    a("KA_helper:")
    vm = VM(a)
    a(f"""
    s_add_u32 s28, s28, 512
    s_add_u32 s30, s30, {4*196608}
    s_lshr_b32 s33, s26, 1                  ; chl
    s_and_b32 s34, s26, 1                   ; nh
    s_lshl_b32 s35, s2, 1
    s_add_u32 s35, s35, s33                 ; channel d
    s_lshl_b32 s54, s35, 8
    s_lshl_b32 s55, s34, 7
    s_add_u32 s54, s54, s55
    v_lshl_add_u32 v1, v0, 1, s54
    s_lshl_b32 s55, s35, 1
    v_mov_b32 v2, s55
    """)
    for r in range(20, 28): a(f"v_mov_b32 v{r}, 0")
    for k in range(6): vm.op(f"global_load_short_d16_hi v{20+k}, v1, s[{36+2*k}:{37+2*k}]")
    vm.op("global_load_short_d16_hi v26, v2, s[48:49]")
    m_par = vm.op("global_load_short_d16_hi v27, v2, s[50:51]")
    a(f"""
    s_lshl_b32 s55, s2, 3
    s_lshl_b32 s56, s26, 1
    s_add_u32 s55, s55, s56
    s_lshl_b32 s56, s55, 10
    v_lshlrev_b32 v3, 5, v0                 ; lane*32 : (l>>5)*1024 + (l&31)*32
    v_and_b32 v4, 0x3ff, v3
    """)
    vm.op("buffer_load_dwordx4 v[28:31], v3, s[8:11], s56 offen")
    vm.op("buffer_load_dwordx4 v[32:35], v3, s[8:11], s56 offen offset:16")
    vm.op("global_load_dwordx4 v[36:39], v4, s[52:53]")
    m_gate = vm.op("global_load_dwordx4 v[40:43], v4, s[52:53] offset:16")
    a(f"""
    v_lshrrev_b32 v5, 2, v0
    v_lshlrev_b32 v5, 10, v5
    v_and_b32 v6, 3, v0
    v_lshl_add_u32 v5, v6, 4, v5
    s_lshl_b32 s56, s27, 15
    s_lshl_b32 s57, s24, 6
    s_add_u32 s56, s56, s57
    s_add_u32 s57, s56, 16384
    s_lshl_b32 s58, s26, 11
    s_add_u32 s58, s58, {UTS}
    s_mov_b32 m0, s58
    """)
    vm.op("buffer_load_dwordx4 v5, s[8:11], s56 offen lds")
    a("s_add_u32 m0, s58, 1024")
    m_ut = vm.op("buffer_load_dwordx4 v5, s[8:11], s57 offen lds")
    a(f"""
    s_lshl_b32 s59, s26, 13
    s_add_u32 s59, s59, {KGS}
    v_bfe_u32 v1, v0, 1, 2
    v_lshlrev_b32 v1, 4, v1
    v_lshl_add_u32 v1, v0, 6, v1
    v_add_u32 v14, s59, v1
    v_xor_b32 v15, 16, v14
    v_xor_b32 v16, 32, v14
    v_xor_b32 v17, 48, v14
    v_bfe_u32 v1, v0, 3, 1
    v_lshlrev_b32 v1, 4, v1
    v_xor_b32 v18, v13, v1
    v_add_u32 v18, s59, v18
    v_xor_b32 v19, 32, v18
    v_add_u32 v19, 256, v19
    """)
    stamp(a, 1)
    a("s_barrier")
    vm.wait(m_par)
    stamp(a, 2)
    a(f"""
    v_mul_f32 v26, {f32(LOG2E)}, v26
    v_exp_f32 v26, v26
    v_cvt_pk_bf16_f32 v26, v26, v26
    v_lshlrev_b32 v26, 16, v26
    v_mul_f32 v20, v26, v20
    v_mul_f32 v21, v26, v21
    v_mul_f32 v20, {f32(LOG2E)}, v20
    v_mul_f32 v21, {f32(1/(2*math.pi))}, v21
    """)
    for (z, e) in ((44, 1.0), (46, 8.0), (48, 256.0)):
        a(f"""
        v_mul_f32 v52, {f32(e)}, v20
        v_mul_f32 v53, {f32(e)}, v21
        v_exp_f32 v52, v52
        v_fract_f32 v53, v53
        v_cos_f32 v{z}, v53
        v_sin_f32 v{z+1}, v53
        v_pk_mul_f32 {vr(z,2)}, {vr(z,2)}, v[52:53] op_sel:[0,0] op_sel_hi:[1,0]
        """)
    cmuls(a, [(50, 22, 24)])
    a("v_pk_mul_f32 v[50:51], v[50:51], v[26:27] op_sel:[0,0] op_sel_hi:[1,0]")
    vm.wait(m_gate)
    a("v_mov_b32 v54, 0")
    for k in range(8): a(f"v_dot2_f32_bf16 v54, v{28+k}, v{36+k}, v54\ns_nop 2" if False else f"v_dot2c_f32_bf16 v54, v{28+k}, v{36+k}")
    a("s_nop 2")
    for sh in (1, 2, 4, 8): a(f"v_add_f32_dpp v54, v54, v54 row_shr:{sh} row_mask:0xf bank_mask:0xf bound_ctrl:0")
    a("v_add_f32_dpp v54, v54, v54 row_bcast:15 row_mask:0xa bank_mask:0xf")
    a(f"""
    v_cvt_pk_bf16_f32 v54, v54, v54
    v_lshlrev_b32 v54, 16, v54
    v_mul_f32 v54, {f32(-LOG2E)}, v54
    v_exp_f32 v54, v54
    v_add_f32 v54, 1.0, v54
    v_rcp_f32 v54, v54
    v_cvt_pk_bf16_f32 v54, v54, v54
    v_lshlrev_b32 v54, 16, v54
    v_lshrrev_b32 v55, 5, v0
    v_lshlrev_b32 v55, 2, v55
    s_lshl_b32 s55, s55, 2
    s_add_u32 s55, s55, {GG}
    s_mov_b32 exec_lo, 0x80000000
    s_mov_b32 exec_hi, 0x80000000
    """)
    vm.op("buffer_store_dword v54, v55, s[16:19], s55 offen")
    a("s_mov_b64 exec, -1")
    stamp(a, 3)
    a("s_barrier")
    dma_chunk(); vm.n += 7; m_c4 = vm.n
    P = lambda j: 64 + 2*j
    a(f"v_mov_b32 v{P(0)}, 1.0\nv_mov_b32 v{P(0)+1}, 0\nv_mov_b32 v{P(1)}, v46\nv_mov_b32 v{P(1)+1}, v47")
    cmuls(a, [(P(2), P(1), P(1))])
    cmuls(a, [(P(3), P(1), P(2)), (P(4), P(2), P(2))])
    cmuls(a, [(P(4+j), P(j), P(4)) for j in (1, 2, 3, 4)])
    cmuls(a, [(P(8+j), P(j), P(8)) for j in range(1, 9)])
    def pack_write(src, neg_im):
        pass
    def wr_chunk(c, srcs, neg_im):
        n = "-" if neg_im else ""
        for k in range(4):
            x, y = srcs[2*k], srcs[2*k+1]
            a(f"v_cvt_pk_bf16_f32 v{56+k}, v{x}, v{y}")
        for k in range(4):
            x, y = srcs[2*k], srcs[2*k+1]
            a(f"v_cvt_pk_bf16_f32 v{60+k}, {n}v{x+1}, {n}v{y+1}")
        a(f"ds_write_b128 v{14+c}, v[56:59]\nds_write_b128 v{14+c}, v[60:63] offset:4096")
    wr_chunk(0, [P(j) for j in range(8)], True)
    wr_chunk(1, [P(j) for j in range(8, 16)], True)
    stamp(a, 4)
    a("s_barrier")
    dma_chunk(); vm.n += 7; m_c5 = vm.n
    cmuls(a, [(P(16+j), P(j), P(16)) for j in range(1, 16)])
    wr_chunk(2, [P(j) for j in range(16, 24)], True)
    wr_chunk(3, [P(j) for j in range(24, 32)], True)
    a("s_waitcnt lgkmcnt(0)")
    BF = 128
    for s in range(8):
        a(f"ds_read_b64_tr_b16 {vr(BF+4*s,2)}, v18 offset:{s*1024}\nds_read_b64_tr_b16 {vr(BF+4*s+2,2)}, v19 offset:{s*1024}")
    stamp(a, 5)
    a("s_barrier")
    dma_chunk(); vm.n += 7; m_c6 = vm.n
    T = lambda i: 64 + 2*i
    a(f"v_mov_b32 v{T(0)}, v50\nv_mov_b32 v{T(0)+1}, v51")
    Z = {256: 48, 512: 86, 768: 88, 1024: 90, 1280: 92, 1536: 94, 1792: 96}
    cmuls(a, [(T(1), 50, 44), (82, 44, 44), (T(8), 50, 46), (Z[512], 48, 48)])
    cmuls(a, [(T(2), T(0), 82), (T(3), T(1), 82), (84, 82, 82), (Z[768], Z[512], 48), (Z[1024], Z[512], Z[512])])
    cmuls(a, [(T(4+i), T(i), 84) for i in range(4)] + [(Z[1280], Z[1024], 48), (Z[1536], Z[1024], Z[512]), (Z[1792], Z[1024], Z[768])])
    cols = [0,1,2,3,4,5,6,7, 256,258,260,512, 260,262,264,768, 516,520,1024,1032, 772,776,1536,1544, 1280,1288,0,0, 1792,1800,0,0]
    a("s_waitcnt lgkmcnt(0)")
    wr_chunk(0, [T(i) for i in range(8)], False)
    loc = {i: T(i) for i in range(9)}
    def chunk_vals(c):
        jobs = []; srcs = []; nxt = 98
        for al in cols[8*c:8*c+8]:
            if al not in loc_c:
                loc_c[al] = nxt; jobs.append((nxt, T(al % 256), Z[al - al % 256])); nxt += 2
            srcs.append(loc_c[al])
        cmuls(a, jobs)
        wr_chunk(c, srcs, False)
    loc_c = dict(loc); chunk_vals(1)
    vm.wait(m_c4)
    stamp(a, 6)
    a("s_barrier")
    dma_chunk(); vm.n += 7; m_c7 = vm.n
    loc_c = dict(loc); chunk_vals(2)
    loc_c = dict(loc); chunk_vals(3)
    a("s_waitcnt lgkmcnt(0)")
    AFr = 64
    for s in range(8):
        a(f"ds_read_b64_tr_b16 {vr(AFr+4*s,2)}, v18 offset:{s*1024}\nds_read_b64_tr_b16 {vr(AFr+4*s+2,2)}, v19 offset:{s*1024}")
    a(f"v_add_u32 v5, s58, v13")
    D = 96
    for s in range(8):
        a(f"s_waitcnt lgkmcnt({14-2*s})")
        a(f"v_mfma_f32_32x32x16_bf16 {vr(D,16)}, {vr(AFr+4*s,4)}, {vr(BF+4*s,4)}, {'0' if s == 0 else vr(D,16)}")
    for i in range(2):
        a(f"ds_read_b64_tr_b16 {vr(28+4*i,2)}, v5 offset:{i*1024}\nds_read_b64_tr_b16 {vr(30+4*i,2)}, v5 offset:{i*1024+256}")
    a(f"""
    v_and_b32 v1, 31, v0
    v_mul_u32_u24 v1, 4608, v1
    v_lshrrev_b32 v2, 5, v0
    v_lshl_add_u32 v1, v2, 4, v1
    s_mul_i32 s56, s24, {32*4608}
    s_lshl_b32 s57, s25, 1
    s_add_u32 s57, s57, s33
    s_mul_i32 s57, s57, 144
    s_add_u32 s56, s56, s57
    s_lshl_b32 s57, s34, 6
    s_add_u32 s56, s56, s57
    s_add_u32 s56, s56, {UT}
    v_lshl_add_u32 v3, v0, 4, s59
    s_waitcnt lgkmcnt(0)
    """)
    vm.wait(m_c5)
    vm.op("buffer_store_dwordx4 v[28:31], v1, s[16:19], s56 offen")
    vm.op("buffer_store_dwordx4 v[32:35], v1, s[16:19], s56 offen offset:32")
    a("s_cmp_eq_u32 s34, 0\ns_cbranch_scc1 KA_h_nowr")
    for q in range(4): a(f"ds_write_b128 v3, {vr(D+4*q,4)} offset:{q*1024}")
    a("s_waitcnt lgkmcnt(0)\nKA_h_nowr:")
    a("s_barrier")
    a("s_cmp_lg_u32 s34, 0\ns_cbranch_scc1 KA_h_skip")
    for q in range(4): a(f"ds_read_b128 {vr(64+4*q,4)}, v3 offset:{8192+q*1024}")
    a(f"""
    v_and_b32 v1, 31, v0
    v_lshlrev_b32 v1, 4, v1                 ; 16*j
    v_lshrrev_b32 v2, 5, v0                 ; hi
    v_lshl_add_u32 v4, v2, 3, v1
    v_sub_u32 v4, {2*2044-512}, v4
    v_lshl_add_u32 v5, v2, 9, v1
    v_sub_u32 v5, {2*1528}, v5              ; seg2
    v_lshl_add_u32 v6, v2, 10, v1
    v_sub_u32 v6, {2*760}, v6               ; seg3 g=1 (g=0: +512)
    v_and_b32 v7, 1, v0
    v_cmp_eq_u32 vcc, 0, v7                 ; even j
    v_cmp_eq_u32 s[60:61], 0, v0
    v_cndmask_b32 v27, 0, v27, s[60:61]
    s_lshl_b32 s56, s35, 12
    s_add_u32 s56, s56, {KS}
    s_waitcnt lgkmcnt(0)
    """)
    for r in range(14): a(f"v_add_f32 v{D+r}, v{D+r}, v{64+r}")
    a(f"v_add_f32 v{D}, v{D}, v27")
    r = lambda k: f"v{D+k}"
    a(f"""
    v_cndmask_b32 v44, {r(11)}, {r(10)}, vcc
    v_cndmask_b32 v45, {r(13)}, {r(12)}, vcc
    v_cvt_pk_bf16_f32 v64, {r(3)}, {r(2)}
    v_cvt_pk_bf16_f32 v65, {r(1)}, {r(0)}
    v_cvt_pk_bf16_f32 v66, {r(6)}, {r(5)}
    v_cvt_pk_bf16_f32 v67, {r(4)}, {r(4)}
    v_cvt_pk_bf16_f32 v68, {r(9)}, {r(9)}
    v_cvt_pk_bf16_f32 v69, {r(8)}, {r(8)}
    v_cvt_pk_bf16_f32 v70, {r(8)}, {r(7)}
    v_cvt_pk_bf16_f32 v71, {r(7)}, {r(7)}
    v_cvt_pk_bf16_f32 v72, {r(11)}, {r(11)}
    v_cvt_pk_bf16_f32 v73, {r(11)}, v44
    v_cvt_pk_bf16_f32 v74, {r(10)}, {r(10)}
    v_mov_b32 v75, v74
    v_cvt_pk_bf16_f32 v76, {r(13)}, {r(13)}
    v_cvt_pk_bf16_f32 v77, {r(13)}, v45
    v_cvt_pk_bf16_f32 v78, {r(12)}, {r(12)}
    v_mov_b32 v79, v78
    KA_h_skip:
    """)
    vm.wait(m_c6)
    a("s_barrier")
    vm.wait(m_c7)
    a("s_barrier")
    stamp_flush(a, 0, 7)
    if STAMP: a("s_mov_b64 exec, -1")
    a(f"""
    s_cmp_lg_u32 s34, 0
    s_cbranch_scc1 KA_end
    buffer_store_dwordx2 v[64:65], v4, s[16:19], s56 offen offset:512
    buffer_store_dwordx2 v[66:67], v4, s[16:19], s56 offen
    buffer_store_dwordx4 v[68:71], v5, s[16:19], s56 offen
    buffer_store_dwordx4 v[72:75], v6, s[16:19], s56 offen offset:512
    buffer_store_dwordx4 v[76:79], v6, s[16:19], s56 offen
    KA_end:
    s_endpgm
    """)
    return kd("ka_kernel", 160, 64), "; @launch kernel=ka_kernel grid=(256,1,1) block=(512,1,1) lds=155648"

def kernel_b(a):
    SS = 131072
    UL = SS
    RL = SS + 10240
    LDS = SS + 10240 + 2*8576
    kernel_begin(a, "kb_kernel")
    a(f"""
    s_cmp_ge_u32 s2, 256
    s_cbranch_scc1 KB_end
    {"s_memrealtime s[64:65]" if STAMP else ""}
    s_load_dwordx2 s[20:21], s[0:1], 120
    v_lshrrev_b32 v1, 6, v0
    v_and_b32 v0, 63, v0
    v_readfirstlane_b32 s3, v1
    s_and_b32 s22, s2, 7
    s_lshl_b32 s22, s22, 2
    s_bfe_u32 s23, s2, 0x20003
    s_add_u32 s22, s22, s23          ; head
    s_lshr_b32 s23, s2, 5            ; qb
    v_lshlrev_b32 v1, 4, v0          ; lane*16
    s_lshl_b32 s24, s22, 17
    s_add_u32 s24, s24, {KV}
    s_waitcnt lgkmcnt(0)
    """)
    srd(a, 16, 20, WS_BYTES)
    a("s_cmp_ge_u32 s3, 8\ns_cbranch_scc1 KB_conv")
    Q, KFr, V0, V1 = 4, 8, 12, [16, 20]
    S = [32, 48]; O = 64; NM = 80
    a(f"""
    s_lshl_b32 s25, s23, 3
    s_add_u32 s25, s25, s3
    s_lshl_b32 s26, s22, 16
    s_lshl_b32 s27, s25, 10
    s_add_u32 s26, s26, s27
    buffer_load_dwordx4 {vr(Q,4)}, v1, s[16:19], s26 offen
    s_lshl_b32 s27, s3, 10
    s_add_u32 s28, s24, s27
    s_mov_b32 m0, s27
    """)
    for k in range(4):
        a(f"buffer_load_dwordx4 v1, s[16:19], s28 offen lds")
        if k < 3: a("s_add_u32 s28, s28, 8192\ns_add_u32 m0, m0, 8192")
    a(f"""
    v_and_b32 v2, 31, v0
    v_lshlrev_b32 v2, 2, v2
    s_lshl_b32 s27, s25, 7
    s_add_u32 s27, s27, {GG}
    buffer_load_dword v3, v2, s[16:19], s27 offen
    v_mov_b32 v24, 0xdddd
    s_mov_b32 s30, 0x0000ffff
    s_mov_b32 s31, 0x0000ffff
    v_mov_b32 v25, 0x3f803f80
    """)
    if OPT.get("zrows"):
        a("v_and_b32 v26, 0x1b, v0\nv_cmp_eq_u32 vcc, 16, v26\nv_cndmask_b32 v25, 0, v25, vcc")
    for r in range(V0, V0+12): a(f"v_mov_b32 v{r}, v25")
    a(f"""
    s_mov_b32 s32, 1
    s_mov_b32 s33, 3
    s_waitcnt vmcnt(1)
    s_barrier
    {"s_memrealtime s[70:71]" if STAMP else ""}
    {"s_memtime s[66:67]" if STAMP else ""}
    KB_maxpass:
    v_mov_b32 v26, v1
    v_mov_b32 v27, 0xff800000
    KB_maxloop:
    ds_read_b128 {vr(KFr,4)}, v26
    v_add_u32 v26, 2048, v26
    s_waitcnt lgkmcnt(0)
    v_mfma_f32_32x32x16_bf16 {vr(S[0],16)}, {vr(KFr,4)}, {vr(Q,4)}, 0
    s_sub_u32 s32, s32, 1
    s_cmp_lg_u32 s32, 0
    """)
    for k in range(8): a(f"v_max3_f32 v27, v27, v{S[0]+2*k}, v{S[0]+2*k+1}")
    a(f"""
    s_cbranch_scc1 KB_maxloop
    ds_read_b128 {vr(KFr,4)}, v1
    v_mov_b32 v28, v27
    v_permlane32_swap_b32 v27, v28
    v_max_f32 v27, v27, v28
    v_sub_f32 v27, 0, v27
    """)
    for r in range(16): a(f"v_mov_b32 v{NM+r}, v27")
    for r in range(16): a(f"v_mov_b32 v{O+r}, 0")
    for r in range(8, 16): a(f"v_mov_b32 v{S[1]+r}, 0")
    a(f"""
    v_mov_b32 v26, v1
    s_waitcnt lgkmcnt(0)
    v_mfma_f32_32x32x16_bf16 {vr(S[0],16)}, {vr(KFr,4)}, {vr(Q,4)}, {vr(NM,16)}
    ds_read_b128 {vr(KFr,4)}, v26 offset:2048
    s_mov_b64 exec, s[30:31]
    ds_read_b128 {vr(V0,4)}, v26 offset:1024
    ds_read_b128 {vr(V1[0],4)}, v26 offset:1280
    s_mov_b64 exec, -1
    s_mov_b32 s34, 0
    s_nop 7
    KB_loop:
    s_cmp_lg_u32 s34, s33
    s_cbranch_scc1 KB_nobar
    {"s_memrealtime s[72:73]" if STAMP else ""}
    s_barrier
    {"s_memrealtime s[74:75]" if STAMP else ""}
    KB_nobar:
    """)
    UN = 4
    for i in range(UN):
        cur, nxt = S[i & 1], S[(i+1) & 1]
        e = [f"v_exp_f32 v{cur+k}, v{cur+k}" for k in range(16)]
        for x in e[0:2]: a(x)
        a(f"v_smfmac_f32_32x32x32_bf16 {vr(O,16)}, {vr(V1[(i+1)&1],4)}, {vr(nxt+8,8)}, v24")
        for x in e[2:7]: a(x)
        a("s_waitcnt lgkmcnt(0)")
        a(f"v_mfma_f32_32x32x16_bf16 {vr(nxt,16)}, {vr(KFr,4)}, {vr(Q,4)}, {vr(NM,16)}")
        for x in e[7:12]: a(x)
        a(f"v_smfmac_f32_32x32x32_bf16 {vr(O,16)}, {vr(V0,4)}, {vr(cur,8)}, v24")
        a(f"ds_read_b128 {vr(KFr,4)}, v26 offset:{(i+2)*2048}")
        a("s_mov_b64 exec, s[30:31]")
        a(f"ds_read_b128 {vr(V0,4)}, v26 offset:{(i+1)*2048+1024}")
        a(f"ds_read_b128 {vr(V1[(i+1)&1],4)}, v26 offset:{(i+1)*2048+1280}")
        a("s_mov_b64 exec, -1")
        for x in e[12:16]: a(x)
    a(f"""
    v_add_u32 v26, {UN*2048}, v26
    s_add_u32 s34, s34, 1
    s_cmp_lt_u32 s34, {64//UN}
    s_cbranch_scc1 KB_loop
    v_smfmac_f32_32x32x32_bf16 {vr(O,16)}, {vr(V1[1],4)}, {vr(S[1]+8,8)}, v24
    s_waitcnt vmcnt(0) lgkmcnt(0)
    v_rcp_f32 v28, v{O+8}
    v_mov_b32 v29, 0
    v_mul_f32 v28, v28, v3
    """)
    for r in range(8): a(f"v_mul_f32 v{S[0]+r}, v{O+r}, v28")
    for r in range(8): a(f"v_fma_f32 v29, v{S[0]+r}, 0, v29")
    a(f"""
    v_cmp_u_f32 vcc, v29, v29
    s_mov_b32 s36, {f32(2.0**64)}
    v_cmp_nge_f32 s[38:39], s36, v{O+8}
    s_or_b64 vcc, vcc, s[38:39]
    s_cmp_eq_u32 s33, 3
    s_cselect_b64 vcc, vcc, 0
    s_cbranch_vccz KB_store
    s_mov_b32 s32, 64
    s_mov_b32 s33, 1000
    """)
    for r in range(V0, V0+12): a(f"v_mov_b32 v{r}, v25")
    a("s_branch KB_maxpass\nKB_store:")
    for r in range(4): a(f"v_cvt_pk_bf16_f32 v{S[1]+r}, v{S[0]+2*r}, v{S[0]+2*r+1}")
    a(f"""
    s_lshl_b32 s26, s25, 15
    s_lshl_b32 s27, s22, 10
    s_add_u32 s26, s26, s27
    s_add_u32 s26, s26, {OF}
    buffer_store_dwordx4 {vr(S[1],4)}, v1, s[16:19], s26 offen
    """)
    stamp(a, 6)
    if STAMP: a("s_memtime s[68:69]")
    if STAMP: a("s_waitcnt vmcnt(0)")
    stamp_flush(a, 1, 7)
    a("s_endpgm")
    a(f"""
    KB_conv:
    s_sub_u32 s3, s3, 8
    s_lshr_b32 s25, s3, 1            ; chl
    s_and_b32 s26, s3, 1             ; p
    s_lshl_b32 s27, s2, 1
    s_add_u32 s27, s27, s25          ; channel
    s_mul_i32 s28, s25, 8576
    s_add_u32 s28, s28, {RL}
    s_mul_i32 s29, s25, 5120
    s_add_u32 s29, s29, {UL}
    s_lshl_b32 s30, s26, 11          ; p*2048
    s_lshl_b32 s31, s27, 12
    s_add_u32 s31, s31, {KS}
    s_add_u32 s31, s31, s30
    s_add_u32 m0, s28, s30
    s_mul_i32 s32, s27, 4608
    buffer_load_dwordx4 v1, s[16:19], s31 offen lds
    buffer_load_dwordx4 v1, s[16:19], s31 offen offset:1024 lds
    s_add_u32 s32, s32, {UT}
    s_add_u32 s32, s32, s30
    s_add_u32 m0, s29, s30
    s_nop 0
    buffer_load_dwordx4 v1, s[16:19], s32 offen lds
    buffer_load_dwordx4 v1, s[16:19], s32 offen offset:1024 lds
    buffer_load_dwordx4 v1, s[16:19], s32 offen offset:2048 lds
    s_lshl_b32 s33, s3, 12
    s_add_u32 s33, s33, 32768
    s_add_u32 s34, s33, s24
    s_mov_b32 s35, 0
    KB_bulk:
    s_mov_b32 m0, s33
    s_add_u32 s33, s33, 16384
    """)
    for k in range(4): a(f"buffer_load_dwordx4 v1, s[16:19], s34 offen offset:{k*1024} lds")
    a(f"""
    s_add_u32 s34, s34, 16384
    s_add_u32 s35, s35, 1
    s_cmp_lg_u32 s35, 3
    s_cbranch_scc1 KB_bulk2
    v_mov_b32 v4, 0
    v_lshlrev_b32 v2, 2, v0
    v_add_u32 v2, s28, v2
    s_mov_b32 exec_hi, 0
    ds_write_b32 v2, v4 offset:4096
    ds_write_b32 v2, v4 offset:{4288+4096}
    s_mov_b64 exec, -1
    s_waitcnt vmcnt(12) lgkmcnt(0)
    s_barrier
    KB_bulk2:
    s_cmp_lt_u32 s35, 6
    s_cbranch_scc1 KB_bulk
    v_add_u32 v2, s28, v1
    v_add_u32 v2, s30, v2
    ds_read_b128 v[8:11], v2 offset:2
    ds_read_b128 v[12:15], v2 offset:1026
    ; addresses
    v_and_b32 v3, 31, v0             ; b / n
    v_lshrrev_b32 v4, 5, v0          ; hi
    s_lshl_b32 s36, s26, 5
    s_sub_u32 s36, 63, s36
    v_lshl_add_u32 v5, v4, 3, s36
    v_sub_u32 v5, v5, v3             ; i0
    v_and_b32 v6, 1, v5
    v_lshrrev_b32 v5, 1, v5
    v_lshlrev_b32 v5, 2, v5
    v_mul_u32_u24 v6, 4288, v6
    v_add3_u32 v5, v5, v6, s28       ; A addr
    v_mul_u32_u24 v6, 144, v3
    v_lshl_add_u32 v6, v4, 4, v6
    s_sub_u32 s36, s29, {31*144}
    v_add_u32 v6, s36, v6            ; B addr
    s_waitcnt lgkmcnt(0)
    ds_write_b128 v2, v[8:11] offset:4288
    ds_write_b128 v2, v[12:15] offset:{4288+1024}
    """)
    for r in range(32, 64): a(f"v_mov_b32 v{r}, 0")
    a(f"""
    s_mov_b32 s35, {0 if OPT.get("noconv") else 31}
    {"s_memrealtime s[66:67]" if STAMP else ""}
    s_waitcnt vmcnt(0) lgkmcnt(0)
    {"s_memrealtime s[68:69]" if STAMP else ""}
    s_barrier
    {"s_memrealtime s[70:71]" if STAMP else ""}
    KB_cloop:
    s_lshl_b32 exec_lo, -1, s35
    s_lshl_b32 exec_hi, -1, s35
    """)
    for s in range(4): a(f"ds_read_b128 {vr(32+4*s,4)}, v6 offset:{32*s}")
    a("s_mov_b64 exec, -1")
    for s in range(4):
        a(f"ds_read2_b32 {vr(16+4*s,2)}, v5 offset0:{8*s} offset1:{8*s+1}")
        a(f"ds_read2_b32 {vr(18+4*s,2)}, v5 offset0:{8*s+2} offset1:{8*s+3}")
    a("v_add_u32 v5, 128, v5\nv_add_u32 v6, 144, v6")
    for s in range(4):
        a(f"s_waitcnt lgkmcnt({6-2*s})")
        a(f"v_mfma_f32_32x32x16_bf16 v[48:63], {vr(16+4*s,4)}, {vr(32+4*s,4)}, v[48:63]")
    a(f"""
    s_sub_u32 s35, s35, 1
    s_cmp_ge_i32 s35, 0
    s_cbranch_scc1 KB_cloop
    v_lshlrev_b32 v3, 7, v3
    v_lshl_add_u32 v3, v4, 4, v3     ; n*128 + hi*16
    s_lshl_b32 s31, s27, 12
    s_lshl_b32 s32, s26, 6
    s_add_u32 s31, s31, s32
    s_add_u32 s31, s31, {BT}
    """)
    for r in range(8): a(f"v_cvt_pk_bf16_f32 v{16+r}, v{48+2*r}, v{49+2*r}")
    a(f"""
    buffer_store_dwordx4 v[16:19], v3, s[16:19], s31 offen
    buffer_store_dwordx4 v[20:23], v3, s[16:19], s31 offen offset:32
    s_add_u32 s3, s3, 8
    """)
    stamp_flush(a, 1, 4)
    a("KB_end:\ns_endpgm")
    return kd("kb_kernel", 96, 48), f"; @launch kernel=kb_kernel grid=(256,1,1) block=(768,1,1) lds={LDS}"

def kernel_c(a):
    kernel_begin(a, "kc_kernel")
    a(f"""
    s_cmp_ge_u32 s2, 256
    s_cbranch_scc1 KC_end
    {"s_memrealtime s[64:65]" if STAMP else ""}
    s_load_dwordx2 s[4:5], s[0:1], 16
    s_load_dwordx2 s[6:7], s[0:1], 104
    s_load_dwordx2 s[20:21], s[0:1], 120
    v_lshrrev_b32 v1, 6, v0
    v_and_b32 v0, 63, v0
    v_readfirstlane_b32 s3, v1
    s_and_b32 s22, s2, 7
    s_lshl_b32 s22, s22, 2
    s_bfe_u32 s23, s2, 0x20003
    s_add_u32 s22, s22, s23
    s_lshr_b32 s23, s2, 5
    s_and_b32 s24, s3, 1             ; wt
    s_lshr_b32 s25, s3, 1            ; wc
    s_lshl_b32 s26, s22, 1
    s_add_u32 s26, s26, s24          ; t tile
    s_lshl_b32 s27, s23, 1
    s_add_u32 s27, s27, s25
    v_lshlrev_b32 v1, 4, v0
    v_lshrrev_b32 v2, 2, v0
    v_lshlrev_b32 v2, 10, v2
    v_and_b32 v3, 3, v0
    v_lshl_add_u32 v2, v3, 4, v2
    s_lshl_b32 s28, s24, 18
    s_lshl_b32 s29, s27, 6
    s_add_u32 s28, s28, s29
    s_lshl_b32 s29, s25, 15
    s_lshl_b32 s30, s24, 14
    s_add_u32 s29, s29, s30
    s_waitcnt lgkmcnt(0)
    """)
    srd(a, 8, 4, 524288)
    srd(a, 12, 6, 2097152)
    srd(a, 16, 20, WS_BYTES)
    a(f"""
    s_mov_b32 m0, s29
    s_mov_b32 s30, 16
    KC_dma:
    buffer_load_dwordx4 v2, s[8:11], s28 offen lds
    s_add_u32 s28, s28, 16384
    s_add_u32 m0, m0, 1024
    s_sub_u32 s30, s30, 1
    s_cmp_lg_u32 s30, 0
    s_cbranch_scc1 KC_dma
    v_and_b32 v4, 31, v0
    v_lshrrev_b32 v5, 5, v0
    v_lshlrev_b32 v6, 2, v4
    s_lshl_b32 s30, s26, 7
    s_add_u32 s30, s30, {GG}
    buffer_load_dword v7, v6, s[16:19], s30 offen
    v_lshlrev_b32 v6, 12, v4
    v_lshl_add_u32 v6, v5, 4, v6     ; d*4096 + hi*16
    s_lshl_b32 s30, s27, 17
    s_lshl_b32 s31, s26, 6
    s_add_u32 s30, s30, s31
    s_add_u32 s30, s30, {BT}
    buffer_load_dwordx4 v[8:11], v6, s[16:19], s30 offen
    buffer_load_dwordx4 v[12:15], v6, s[16:19], s30 offen offset:32
    s_lshl_b32 s30, s26, 15
    s_add_u32 s30, s30, {OF}
    """)
    OFr = 64
    for h in range(32):
        if h % 4 == 0 and h: a("s_add_u32 s30, s30, 4096")
        a(f"buffer_load_dwordx4 {vr(OFr+4*h,4)}, v1, s[16:19], s30 offen offset:{(h%4)*1024}")
    a(f"""
    v_lshlrev_b32 v2, 8, v5
    v_bfe_u32 v3, v0, 2, 2
    v_lshl_add_u32 v2, v3, 6, v2
    v_bfe_u32 v3, v0, 4, 1
    v_lshl_add_u32 v2, v3, 5, v2
    v_and_b32 v3, 3, v0
    v_lshl_add_u32 v2, v3, 3, v2
    s_lshl_b32 s29, s25, 15
    v_add_u32 v2, s29, v2
    v_lshrrev_b32 v3, 3, v4
    v_bfe_u32 v6, v4, 1, 1
    v_lshl_add_u32 v3, v3, 1, v6
    v_bfe_u32 v6, v4, 2, 1
    v_xor_b32 v6, v6, v5
    v_lshl_add_u32 v3, v6, 4, v3
    v_and_b32 v6, 1, v4
    v_lshlrev_b32 v6, 4, v6
    {"s_memrealtime s[66:67]" if STAMP else ""}
    s_waitcnt vmcnt(34)
    {"s_memrealtime s[68:69]" if STAMP else ""}
    v_sub_f32 v7, 1.0, v7
    v_cvt_pk_bf16_f32 v7, v7, v7
    v_and_b32 v7, 0xffff, v7
    v_lshlrev_b32 v7, v6, v7
    """)
    for k in range(8):
        a(f"v_cmp_eq_u32 vcc, {k}, v3\nv_cndmask_b32 v{16+k}, 0, v7, vcc")
    a(f"""
    s_barrier
    s_waitcnt vmcnt(32)
    v_mfma_f32_32x32x16_bf16 v[48:63], v[8:11], v[16:19], 0
    v_mfma_f32_32x32x16_bf16 v[48:63], v[12:15], v[20:23], v[48:63]
    """)
    NB = 4
    def rd(h):
        f = 24 + 4*(h % NB)
        a(f"ds_read_b64_tr_b16 {vr(f,2)}, v2 offset:{h*1024}\nds_read_b64_tr_b16 {vr(f+2,2)}, v2 offset:{h*1024+512}")
    for h in range(NB-1): rd(h)
    for h in range(32):
        if h + NB - 1 < 32: rd(h + NB - 1)
        left = min(NB-1, 31-h)
        a(f"s_waitcnt vmcnt({31-h}) lgkmcnt({2*left})")
        a(f"v_mfma_f32_32x32x16_bf16 v[48:63], {vr(24+4*(h%NB),4)}, {vr(OFr+4*h,4)}, v[48:63]")
    a(f"""
    {"s_memrealtime s[70:71]" if STAMP else ""}
    v_lshlrev_b32 v1, 10, v4
    v_lshl_add_u32 v1, v5, 4, v1     ; t*1024 + hi*16
    s_lshl_b32 s30, s26, 15
    s_lshl_b32 s31, s27, 6
    s_add_u32 s30, s30, s31
    """)
    for r in range(8): a(f"v_cvt_pk_bf16_f32 v{8+r}, v{48+2*r}, v{49+2*r}")
    a(f"""
    v_permlane32_swap_b32 v8, v10
    v_permlane32_swap_b32 v9, v11
    v_permlane32_swap_b32 v12, v14
    v_permlane32_swap_b32 v13, v15
    buffer_store_dwordx4 v[8:11], v1, s[12:15], s30 offen
    buffer_store_dwordx4 v[12:15], v1, s[12:15], s30 offen offset:32
    """)
    if STAMP: a("s_waitcnt vmcnt(0)")
    stamp_flush(a, 2, 4)
    a("KC_end:\ns_endpgm")
    return kd("kc_kernel", 192, 40), "; @launch kernel=kc_kernel grid=(256,1,1) block=(256,1,1) lds=65536"

def main(out):
    a = Asm()
    parts = [kernel_a(a), kernel_b(a), kernel_c(a)]
    bad = a.check_branches()
    for b in bad: print("BRANCH HAZARD:", b)
    head = "; generated by work/gen/gen.py\n" + "\n".join(p[1] for p in parts) + '\n.amdgcn_target "amdgcn-amd-amdhsa--gfx950"\n.text\n'
    tail = '.section .rodata,"a"\n' + "".join(".p2align 6\n" + p[0] for p in parts)
    open(out, "w").write(head + a.text() + tail)

if __name__ == "__main__":
    if "--stamp" in sys.argv:
        STAMP = True; sys.argv.remove("--stamp")
    for x in list(sys.argv):
        if x.startswith("-D"):
            k, _, v = x[2:].partition("="); OPT[k] = int(v) if v else 1; sys.argv.remove(x)
    main(sys.argv[1] if len(sys.argv) > 1 else f"cdna_kernels/{NAME}.s")
```

```python
import sys, struct, math
from asmlib import Asm

NAME = "gated_mix__softmax_full_mha__ssm_conv_s4__prompt"
def f32(x): return "0x%08x" % struct.unpack("<I", struct.pack("<f", x))[0]
LOG2E = 1.4426950408889634
QF, KV, OF, BT, UT, GG = 0x000000, 0x200000, 0x600000, 0x800000, 0xC00000, 0xF00000
FL = 0xF10000
FUT, FKV, FBT, FO = FL + 0x1000, FL + 0x2000, FL + 0x3000, FL + 0x4000
ST = 0xF80000
WS_BYTES = 0x1000000
STAMP = False
OPT = {}
SPIN = 200000

def vr(b, n): return f"v[{b}:{b+n-1}]"
def srd(a, d, base, nbytes):
    a(f"s_mov_b32 s{d}, s{base}\ns_mov_b32 s{d+1}, s{base+1}\ns_mov_b32 s{d+2}, {hex(nbytes)}\ns_mov_b32 s{d+3}, 0x00020000")
NST = 14
def stamp(a, k, mode=None):
    if mode != OPT.get("st") and k not in (0, NST-1): return
    if STAMP: a(f"s_memrealtime s[{72+2*k}:{73+2*k}]")
def stamp_flush(a):
    if not STAMP: return
    stamp(a, NST-1)
    a(f"s_lshl_b32 s4, s2, 9\ns_lshl_b32 s5, s3, 6\ns_add_u32 s4, s4, s5\ns_add_u32 s4, s4, {ST}\ns_waitcnt lgkmcnt(0)\ns_mov_b64 exec, 1\nv_mov_b32 v0, 0")
    for k in range(NST):
        a(f"v_mov_b32 v1, s{72+2*k}\nbuffer_store_dword v1, v0, s[16:19], s4 offen offset:{4*k}")

class VM:
    def __init__(self, a): self.a = a; self.n = 0
    def op(self, text):
        self.a(text); self.n += 1; return self.n
    def wait(self, mark, extra=""):
        left = self.n - mark
        assert 0 <= left <= 63, left
        self.a(f"s_waitcnt vmcnt({left}){extra}")

def cmuls(a, jobs):
    for (d, x, y) in jobs:
        a(f"v_pk_mul_f32 {vr(d,2)}, {vr(x,2)}, {vr(y,2)} op_sel:[0,0] op_sel_hi:[0,1]")
    for (d, x, y) in jobs:
        a(f"v_pk_fma_f32 {vr(d,2)}, {vr(x,2)}, {vr(y,2)}, {vr(d,2)} op_sel:[1,1,0] op_sel_hi:[1,0,1] neg_lo:[1,0,0]")

_lab = [0]
def spin(a, vaddr, vtmp, preissued=False):
    _lab[0] += 1; L = f"SP{_lab[0]}"
    a(f"s_mov_b32 s71, {SPIN}")
    if preissued: a(f"s_branch {L}_chk")
    a(f"""
    {L}:
    buffer_load_dword v{vtmp}, v{vaddr}, s[16:19], 0 offen sc1
    {L}_chk:
    s_waitcnt vmcnt(0)
    v_cmp_ne_u32 vcc, s60, v{vtmp}
    s_sub_u32 s71, s71, 1
    s_cselect_b64 vcc, 0, vcc
    s_cbranch_vccnz {L}
    """)

def flag_store(a, soff_sreg, vtmp0, vtmp1):
    a(f"""
    v_mov_b32 v{vtmp0}, 0
    v_mov_b32 v{vtmp1}, s60
    s_mov_b64 exec, 1
    buffer_store_dword v{vtmp1}, v{vtmp0}, s[16:19], s{soff_sreg} offen sc1
    s_mov_b64 exec, -1
    """)

XRING, WRING, UTS = 0, 65536, 114688
SS = 131072
KGS = SS
UL, RL = SS, SS + 10240

def build(a):
    K = NAME + "_kernel"
    a(f".globl {K}\n.p2align 8\n.type {K},@function\n{K}:")
    a("s_cmp_ge_u32 s2, 256\ns_cbranch_scc1 L_end")
    stamp(a, 0)
    a(f"""
    s_load_dwordx4 s[4:7], s[0:1], 0
    s_load_dwordx2 s[58:59], s[0:1], 120
    s_load_dwordx8 s[36:43], s[0:1], 32
    s_load_dwordx8 s[44:51], s[0:1], 64
    s_load_dwordx4 s[52:55], s[0:1], 96
    s_load_dwordx2 s[56:57], s[0:1], 16
    v_lshrrev_b32 v1, 6, v0
    v_and_b32 v0, 63, v0
    v_readfirstlane_b32 s3, v1
    s_and_b32 s22, s2, 7             ; xcd
    s_lshr_b32 s23, s2, 3            ; i
    s_and_b32 s61, s22, 1
    s_lshl_b32 s61, s61, 3
    s_and_b32 s25, s23, 7
    s_add_u32 s61, s61, s25          ; hpA
    s_lshr_b32 s62, s22, 1
    s_lshl_b32 s62, s62, 2
    s_lshr_b32 s26, s23, 3
    s_add_u32 s62, s62, s26          ; tbA
    s_lshl_b32 s63, s22, 2
    s_and_b32 s25, s23, 3
    s_add_u32 s63, s63, s25
    s_lshr_b32 s64, s23, 2
    s_and_b32 s67, s3, 3             ; w4
    s_lshr_b32 s68, s3, 2            ; hf
    s_lshl_b32 s69, s63, 4
    s_lshl_b32 s25, s64, 1
    s_add_u32 s69, s69, s25
    s_lshl_b32 s27, s62, 2
    s_add_u32 s27, s27, s67
    s_lshl_b32 s65, s61, 8
    s_lshl_b32 s25, s27, 2
    s_add_u32 s65, s65, s25
    v_and_b32 v3, 3, v0
    v_lshrrev_b32 v1, 5, v0
    v_lshlrev_b32 v1, 9, v1
    v_bfe_u32 v2, v0, 2, 2
    v_lshl_add_u32 v1, v2, 6, v1
    v_bfe_u32 v2, v0, 4, 1
    v_lshl_add_u32 v1, v2, 5, v1
    v_lshl_add_u32 v13, v3, 3, v1
    s_cmp_ge_u32 s3, 4
    s_cbranch_scc1 A_helper
    """)
    a(f"""
    s_lshl_b32 s28, s27, 15          ; sXo
    s_lshl_b32 s29, s67, 12          ; sXl
    s_mul_i32 s30, s67, 49152
    s_lshl_b32 s31, s61, 6
    s_add_u32 s30, s30, s31          ; sWo
    s_mul_i32 s31, s67, 3072
    s_add_u32 s31, s31, {WRING}      ; sWl
    v_lshrrev_b32 v1, 3, v0
    v_lshlrev_b32 v2, 10, v1
    v_and_b32 v3, 7, v0
    v_lshrrev_b32 v4, 4, v0
    v_xor_b32 v3, v3, v4
    v_lshl_add_u32 v8, v3, 4, v2
    v_xor_b32 v9, 64, v8
    v_add_u32 v9, 7168, v9
    v_add_u32 v10, 14336, v8
    v_add_u32 v11, 14336, v9
    v_lshrrev_b32 v1, 2, v0
    v_mul_u32_u24 v2, 3072, v1
    v_and_b32 v3, 3, v0
    v_lshl_add_u32 v12, v3, 4, v2
    s_waitcnt lgkmcnt(0)
    """)
    srd(a, 8, 4, 2097152); srd(a, 12, 6, 1572864)
    def dma_list(c):
        slot = c & 3
        L = [f"s_add_u32 m0, s29, {slot*16384}"]
        L += [f"buffer_load_dwordx4 v{8+i}, s[8:11], s28 offen offset:{i*1024} lds" for i in range(4)]
        L += [f"s_add_u32 m0, s31, {slot*12288}"]
        L += [f"buffer_load_dwordx4 v12, s[12:15], s30 offen offset:{m*1024} lds" for m in range(3)]
        L += ["s_add_u32 s28, s28, 128", "s_add_u32 s30, s30, 196608"]
        return L
    for c in range(4):
        for x in dma_list(c): a(x)
    a(f"s_mov_b32 s24, {FL}\ns_load_dword s60, s[58:59], s24")
    srd(a, 16, 58, WS_BYTES)
    a(f"""
    v_and_b32 v1, 31, v0
    v_lshrrev_b32 v2, 5, v0
    v_bfe_u32 v3, v0, 1, 3
    v_xor_b32 v2, v2, v3
    v_lshlrev_b32 v1, 7, v1
    v_lshl_add_u32 v1, v2, 4, v1
    v_add_u32 v14, s29, v1
    v_xor_b32 v15, 32, v14
    v_xor_b32 v16, 64, v14
    v_xor_b32 v17, 96, v14
    v_add_u32 v18, {WRING}, v13
    s_waitcnt lgkmcnt(0)
    s_mul_i32 s60, s60, 0x9E3779B1
    s_add_u32 s60, s60, 0x7F4A7C15
    """)
    F = [20, 36]
    AQ, AK, AV = 64, 80, 96
    def rd(f, slot, s):
        a(f"ds_read_b128 {vr(f,4)}, v{14+s} offset:{slot*16384}")
        for m in range(3):
            o = slot*12288 + s*3072 + m*1024
            a(f"ds_read_b64_tr_b16 {vr(f+4+4*m,2)}, v18 offset:{o}")
            a(f"ds_read_b64_tr_b16 {vr(f+6+4*m,2)}, v18 offset:{o+256}")
    pend = []
    def mm(f, first=False):
        for (D, A_, B_) in ((AQ, f+4, f), (AK, f+8, f), (AV, f, f+12)):
            a(f"v_mfma_f32_32x32x16_bf16 {vr(D,16)}, {vr(A_,4)}, {vr(B_,4)}, {'0' if first else vr(D,16)}")
            k = 0
            while pend and k < 1:
                x = pend.pop(0); a(x)
                if x.startswith("buffer"): k += 1
    stamp(a, 1)
    stamp(a, 1, 1)
    a("s_waitcnt vmcnt(21)")
    stamp(a, 2, 1)
    a("s_barrier")
    stamp(a, 2)
    rd(F[0], 0, 0)
    for c in range(8):
        slot = c & 3
        rd(F[1], slot, 1); a("s_waitcnt lgkmcnt(7)"); mm(F[0], c == 0)
        rd(F[0], slot, 2); a("s_waitcnt lgkmcnt(7)"); mm(F[1])
        rd(F[1], slot, 3); a("s_waitcnt lgkmcnt(7)"); mm(F[0])
        while pend: a(pend.pop(0))
        if c < 7:
            stamp(a, 3+c, 2)
            a(f"s_waitcnt vmcnt({14 if c < 5 else 7*(6-c)}) lgkmcnt(0)")
            stamp(a, 3+c, 1)
            a("s_barrier")
            if c == 3: stamp(a, 3)
            rd(F[0], (slot+1) & 3, 0)
            if c < 4: pend += dma_list(c+4)
        else:
            a("s_waitcnt lgkmcnt(0)")
        mm(F[1])
    stamp(a, 4); stamp(a, 10, 1); stamp(a, 10, 2)
    a(f"""
    v_lshlrev_b32 v1, 4, v0
    v_and_b32 v2, 0x33, v0
    v_bfe_u32 v3, v0, 2, 1
    v_lshl_add_u32 v2, v3, 3, v2
    v_bfe_u32 v3, v0, 3, 1
    v_lshl_add_u32 v2, v3, 2, v2
    v_lshlrev_b32 v2, 4, v2
    v_and_b32 v3, 0x2f, v0
    v_lshlrev_b32 v3, 4, v3
    v_bfe_u32 v4, v0, 4, 1
    v_lshl_add_u32 v3, v4, 17, v3
    s_lshl_b32 s33, s61, 17
    s_lshl_b32 s34, s27, 10
    s_add_u32 s33, s33, s34
    s_add_u32 s34, s33, 65536
    s_lshl_b32 s35, s33, 1
    s_add_u32 s35, s35, {KV}
    s_add_u32 s36, s35, 131072
    s_mov_b32 s37, {f32(0.25*LOG2E)}
    """)
    for r in range(8): a(f"v_cvt_pk_bf16_f32 v{28+r}, v{AK+2*r}, v{AK+2*r+1}")
    a("buffer_store_dwordx4 v[28:31], v2, s[16:19], s35 offen sc1\nbuffer_store_dwordx4 v[32:35], v2, s[16:19], s36 offen sc1")
    for r in range(8): a(f"v_cvt_pk_bf16_f32 v{36+r}, v{AV+2*r}, v{AV+2*r+1}")
    a("buffer_store_dwordx4 v[36:39], v3, s[16:19], s35 offen offset:1024 sc1\nbuffer_store_dwordx4 v[40:43], v3, s[16:19], s35 offen offset:1280 sc1")
    for r in range(16): a(f"v_mul_f32 v{AQ+r}, s37, v{AQ+r}")
    for r in range(8): a(f"v_cvt_pk_bf16_f32 v{20+r}, v{AQ+2*r}, v{AQ+2*r+1}")
    a("buffer_store_dwordx4 v[20:23], v1, s[16:19], s33 offen sc1\nbuffer_store_dwordx4 v[24:27], v1, s[16:19], s34 offen sc1")
    a(f"s_add_u32 s65, s65, {FKV}\ns_branch W_start")

    a("A_helper:")
    vm = VM(a)
    a(f"""
    s_setprio 3
    s_lshr_b32 s33, s67, 1                  ; chl
    s_and_b32 s34, s67, 1                   ; nh
    s_add_u32 s35, s69, s33                 ; channel d
    s_lshl_b32 s28, s35, 8
    s_lshl_b32 s29, s34, 7
    s_add_u32 s28, s28, s29
    v_lshl_add_u32 v1, v0, 1, s28
    s_lshl_b32 s29, s35, 1
    v_mov_b32 v2, s29
    v_lshrrev_b32 v5, 2, v0
    v_lshlrev_b32 v5, 10, v5
    v_lshl_add_u32 v5, v3, 4, v5
    s_lshl_b32 s28, s27, 15
    s_lshl_b32 s29, s61, 6
    s_add_u32 s28, s28, s29
    s_add_u32 s29, s28, 16384
    s_lshl_b32 s30, s67, 11
    s_add_u32 s30, s30, {UTS}
    s_mov_b32 m0, s30
    """)
    for r in range(20, 28): a(f"v_mov_b32 v{r}, 0")
    a("s_waitcnt lgkmcnt(0)")
    vm.op("global_load_short_d16_hi v26, v2, s[48:49]")
    for k in range(6): vm.op(f"global_load_short_d16_hi v{20+k}, v1, s[{36+2*k}:{37+2*k}]")
    m_par = vm.op("global_load_short_d16_hi v27, v2, s[50:51]")
    srd(a, 8, 4, 2097152)
    vm.op("buffer_load_dwordx4 v5, s[8:11], s28 offen lds")
    a("s_add_u32 m0, s30, 1024")
    m_ut = vm.op("buffer_load_dwordx4 v5, s[8:11], s29 offen lds")
    a(f"""
    s_mov_b32 s24, {FL}
    s_load_dword s60, s[58:59], s24
    s_lshl_b32 s31, s62, 7
    s_lshl_b32 s32, s61, 3
    s_add_u32 s31, s31, s32
    s_lshl_b32 s32, s67, 1
    s_add_u32 s31, s31, s32
    s_lshl_b32 s32, s31, 10
    v_lshlrev_b32 v3, 5, v0
    v_and_b32 v4, 0x3ff, v3
    """)
    vm.op("buffer_load_dwordx4 v[28:31], v3, s[8:11], s32 offen")
    vm.op("buffer_load_dwordx4 v[32:35], v3, s[8:11], s32 offen offset:16")
    vm.op("global_load_dwordx4 v[36:39], v4, s[52:53]")
    m_gate = vm.op("global_load_dwordx4 v[40:43], v4, s[52:53] offset:16")
    srd(a, 16, 58, WS_BYTES)
    a(f"""
    s_lshl_b32 s66, s67, 13
    s_add_u32 s66, s66, {KGS}               ; own staging base
    v_bfe_u32 v1, v0, 1, 2
    v_lshlrev_b32 v1, 4, v1
    v_lshl_add_u32 v1, v0, 6, v1
    v_add_u32 v14, s66, v1
    v_xor_b32 v15, 16, v14
    v_xor_b32 v16, 32, v14
    v_xor_b32 v17, 48, v14
    v_bfe_u32 v1, v0, 3, 1
    v_lshlrev_b32 v1, 4, v1
    v_xor_b32 v18, v13, v1
    v_add_u32 v18, s66, v18
    v_xor_b32 v19, 32, v18
    v_add_u32 v19, 256, v19
    v_add_u32 v5, s30, v13
    v_and_b32 v1, 31, v0
    v_mul_u32_u24 v1, 4608, v1
    v_lshrrev_b32 v2, 5, v0
    v_lshl_add_u32 v6, v2, 4, v1            ; UT store voff
    s_mul_i32 s28, s61, {32*4608}
    s_lshl_b32 s29, s62, 1
    s_add_u32 s29, s29, s33
    s_mul_i32 s29, s29, 144
    s_add_u32 s28, s28, s29
    s_lshl_b32 s29, s34, 6
    s_add_u32 s28, s28, s29
    s_add_u32 s28, s28, {UT}
    s_waitcnt lgkmcnt(0)
    s_mul_i32 s60, s60, 0x9E3779B1
    s_add_u32 s60, s60, 0x7F4A7C15
    """)
    stamp(a, 1)
    stamp(a, 2, 1); stamp(a, 2, 2)
    a("s_barrier")
    vm.wait(m_par)
    stamp(a, 2)
    a(f"""
    v_mul_f32 v26, {f32(LOG2E)}, v26
    v_exp_f32 v26, v26
    v_cvt_pk_bf16_f32 v26, v26, v26
    v_lshlrev_b32 v26, 16, v26
    v_mul_f32 v20, v26, v20
    v_mul_f32 v21, v26, v21
    v_mul_f32 v20, {f32(LOG2E)}, v20
    v_mul_f32 v21, {f32(1/(2*math.pi))}, v21
    """)
    vm.wait(m_ut)
    for i in range(2):
        a(f"ds_read_b64_tr_b16 {vr(56+4*i,2)}, v5 offset:{i*1024}\nds_read_b64_tr_b16 {vr(58+4*i,2)}, v5 offset:{i*1024+256}")
    def zeval(z, e):
        a(f"""
        v_mul_f32 v52, {f32(e)}, v20
        v_mul_f32 v53, {f32(e)}, v21
        v_exp_f32 v52, v52
        v_fract_f32 v53, v53
        v_cos_f32 v{z}, v53
        v_sin_f32 v{z+1}, v53
        v_pk_mul_f32 {vr(z,2)}, {vr(z,2)}, v[52:53] op_sel:[0,0] op_sel_hi:[1,0]
        """)
    P = lambda j: 64 + 2*j
    zeval(P(1), 8.0)
    a("s_waitcnt lgkmcnt(0)")
    vm.op("buffer_store_dwordx4 v[56:59], v6, s[16:19], s28 offen sc1")
    vm.op("buffer_store_dwordx4 v[60:63], v6, s[16:19], s28 offen offset:32 sc1")
    a(f"v_mov_b32 v{P(0)}, 1.0\nv_mov_b32 v{P(0)+1}, 0\nv_mov_b32 v46, v{P(1)}\nv_mov_b32 v47, v{P(1)+1}")
    cmuls(a, [(P(2), P(1), P(1))])
    cmuls(a, [(P(3), P(1), P(2)), (P(4), P(2), P(2))])
    cmuls(a, [(P(4+j), P(j), P(4)) for j in (1, 2, 3, 4)])
    vm.wait(m_gate)
    a("v_mov_b32 v54, 0")
    for k in range(8): a(f"v_dot2c_f32_bf16 v54, v{28+k}, v{36+k}")
    stamp(a, 3, 1); stamp(a, 3, 2)
    a("s_barrier")
    cmuls(a, [(P(8+j), P(j), P(8)) for j in range(1, 9)])
    for sh in (1, 2, 4, 8): a(f"v_add_f32_dpp v54, v54, v54 row_shr:{sh} row_mask:0xf bank_mask:0xf bound_ctrl:0")
    a("v_add_f32_dpp v54, v54, v54 row_bcast:15 row_mask:0xa bank_mask:0xf")
    a(f"""
    v_cvt_pk_bf16_f32 v54, v54, v54
    v_lshlrev_b32 v54, 16, v54
    v_mul_f32 v54, {f32(-LOG2E)}, v54
    v_exp_f32 v54, v54
    v_add_f32 v54, 1.0, v54
    v_rcp_f32 v54, v54
    v_cvt_pk_bf16_f32 v54, v54, v54
    v_lshlrev_b32 v54, 16, v54
    v_lshrrev_b32 v55, 5, v0
    v_lshlrev_b32 v55, 2, v55
    s_lshl_b32 s31, s31, 2
    s_add_u32 s31, s31, {GG}
    s_mov_b32 exec_lo, 0x80000000
    s_mov_b32 exec_hi, 0x80000000
    """)
    vm.op("buffer_store_dword v54, v55, s[16:19], s31 offen sc1")
    a("s_mov_b64 exec, -1")
    def wr_chunk(c, srcs, neg_im):
        n = "-" if neg_im else ""
        for k in range(4): a(f"v_cvt_pk_bf16_f32 v{28+k}, v{srcs[2*k]}, v{srcs[2*k+1]}")
        for k in range(4): a(f"v_cvt_pk_bf16_f32 v{32+k}, {n}v{srcs[2*k]+1}, {n}v{srcs[2*k+1]+1}")
        a(f"ds_write_b128 v{14+c}, v[28:31]\nds_write_b128 v{14+c}, v[32:35] offset:4096")
    wr_chunk(0, [P(j) for j in range(8)], True)
    wr_chunk(1, [P(j) for j in range(8, 16)], True)
    stamp(a, 4, 1); stamp(a, 4, 2)
    a("s_barrier")
    cmuls(a, [(P(16+j), P(j), P(16)) for j in range(1, 16)])
    wr_chunk(2, [P(j) for j in range(16, 24)], True)
    wr_chunk(3, [P(j) for j in range(24, 32)], True)
    stamp(a, 5, 1); stamp(a, 5, 2)
    a("s_barrier")
    a(f"s_add_u32 s65, s65, {FUT}\ns_waitcnt vmcnt(0) lgkmcnt(0)")
    BF = 128
    for s in range(8):
        a(f"ds_read_b64_tr_b16 {vr(BF+4*s,2)}, v18 offset:{s*1024}\nds_read_b64_tr_b16 {vr(BF+4*s+2,2)}, v19 offset:{s*1024}")
    flag_store(a, 65, 56, 57)
    stamp(a, 3)
    zeval(44, 1.0); zeval(48, 256.0)
    T = lambda i: 64 + 2*i
    cmuls(a, [(T(0), 22, 24)])
    a(f"v_pk_mul_f32 {vr(T(0),2)}, {vr(T(0),2)}, v[26:27] op_sel:[0,0] op_sel_hi:[1,0]")
    Z = {256: 48, 512: 86, 768: 88, 1024: 90, 1280: 92, 1536: 94, 1792: 96}
    cmuls(a, [(T(1), T(0), 44), (82, 44, 44), (T(8), T(0), 46), (Z[512], 48, 48)])
    cmuls(a, [(T(2), T(0), 82), (T(3), T(1), 82), (84, 82, 82), (Z[768], Z[512], 48), (Z[1024], Z[512], Z[512])])
    stamp(a, 6, 1); stamp(a, 6, 2)
    a("s_barrier")
    cmuls(a, [(T(4+i), T(i), 84) for i in range(4)] + [(Z[1280], Z[1024], 48), (Z[1536], Z[1024], Z[512]), (Z[1792], Z[1024], Z[768])])
    cols = [0,1,2,3,4,5,6,7, 256,258,260,512, 260,262,264,768, 516,520,1024,1032, 772,776,1536,1544, 1280,1288,0,0, 1792,1800,0,0]
    a("s_waitcnt lgkmcnt(0)")
    wr_chunk(0, [T(i) for i in range(8)], False)
    def chunk_vals(c):
        loc = {i: T(i) for i in range(9)}
        jobs = []; srcs = []; nxt = 98
        for al in cols[8*c:8*c+8]:
            if al not in loc:
                loc[al] = nxt; jobs.append((nxt, T(al % 256), Z[al - al % 256])); nxt += 2
            srcs.append(loc[al])
        cmuls(a, jobs)
        wr_chunk(c, srcs, False)
    chunk_vals(1)
    stamp(a, 7, 1); stamp(a, 7, 2)
    a("s_barrier")
    chunk_vals(2); chunk_vals(3)
    a("s_waitcnt lgkmcnt(0)")
    AFr, D = 64, 96
    for s in range(8):
        a(f"ds_read_b64_tr_b16 {vr(AFr+4*s,2)}, v18 offset:{s*1024}\nds_read_b64_tr_b16 {vr(AFr+4*s+2,2)}, v19 offset:{s*1024}")
    a(f"""
    s_lshl_b32 s28, s67, 12
    s_add_u32 s28, s28, {UTS}
    v_lshl_add_u32 v3, v0, 4, s28
    v_xor_b32 v7, 4096, v3                  ; partner
    s_lshr_b32 s28, s63, 1
    s_lshl_b32 s28, s28, 8
    s_add_u32 s28, s28, {FUT}
    v_lshl_add_u32 v58, v0, 2, s28
    buffer_load_dword v59, v58, s[16:19], 0 offen sc1
    """)
    for s in range(8):
        a(f"s_waitcnt lgkmcnt({14-2*s})")
        a(f"v_mfma_f32_32x32x16_bf16 {vr(D,16)}, {vr(AFr+4*s,4)}, {vr(BF+4*s,4)}, {'0' if s == 0 else vr(D,16)}")
    a(f"""
    v_and_b32 v1, 31, v0
    v_lshlrev_b32 v1, 4, v1
    v_lshrrev_b32 v2, 5, v0
    s_mul_i32 s28, s33, 8576
    s_mul_i32 s29, s34, 4286
    s_add_u32 s28, s28, s29
    s_add_u32 s28, s28, {RL}
    v_lshl_add_u32 v4, v2, 3, v1
    v_sub_u32 v4, {2*2044-512}, v4
    v_lshl_add_u32 v5, v2, 9, v1
    v_sub_u32 v5, {2*1528}, v5
    v_lshl_add_u32 v6, v2, 10, v1
    v_sub_u32 v6, {2*760}, v6
    v_add_u32 v4, s28, v4
    v_add_u32 v5, s28, v5
    v_add_u32 v6, s28, v6
    """)
    for q in range(4): a(f"ds_write_b128 v3, {vr(D+4*q,4)} offset:{q*1024}")
    a("s_waitcnt lgkmcnt(0)")
    stamp(a, 4)
    stamp(a, 8, 1); stamp(a, 8, 2)
    a("s_barrier")
    for q in range(4): a(f"ds_read_b128 {vr(64+4*q,4)}, v7 offset:{q*1024}")
    spin(a, 58, 59, preissued=True)
    a(f"""
    s_mul_i32 s29, s35, 4608
    s_lshl_b32 s30, s34, 11
    s_add_u32 s29, s29, s30
    s_add_u32 s29, s29, {UT}
    s_mul_i32 s31, s33, 5120
    s_add_u32 s31, s31, s30
    s_add_u32 m0, s31, {UL}
    v_lshlrev_b32 v1, 4, v0
    buffer_load_dwordx4 v1, s[16:19], s29 offen sc1 lds
    buffer_load_dwordx4 v1, s[16:19], s29 offen offset:1024 sc1 lds
    buffer_load_dwordx4 v1, s[16:19], s29 offen offset:2048 sc1 lds
    """)
    stamp(a, 9, 1); stamp(a, 9, 2)
    a("s_barrier")
    a(f"""
    v_and_b32 v7, 1, v0
    v_cmp_eq_u32 vcc, 0, v7
    v_cmp_eq_u32 s[30:31], 0, v0
    v_cndmask_b32 v27, 0, v27, s[30:31]
    v_lshl_add_u32 v2, v0, 2, s28
    v_mov_b32 v3, 0
    s_mov_b32 exec_hi, 0
    ds_write_b32 v2, v3 offset:4096
    s_mov_b64 exec, -1
    s_waitcnt lgkmcnt(1)
    """)
    for r in range(14): a(f"v_add_f32 v{D+r}, v{D+r}, v{64+r}")
    a(f"v_add_f32 v{D}, v{D}, v27")
    r = lambda k: f"v{D+k}"
    a(f"""
    v_cndmask_b32 v44, {r(11)}, {r(10)}, vcc
    v_cndmask_b32 v45, {r(13)}, {r(12)}, vcc
    v_cvt_pk_bf16_f32 v64, {r(3)}, {r(2)}
    v_cvt_pk_bf16_f32 v65, {r(1)}, {r(0)}
    v_cvt_pk_bf16_f32 v66, {r(6)}, {r(5)}
    v_cvt_pk_bf16_f32 v67, {r(4)}, {r(4)}
    ds_write_b64 v4, v[64:65] offset:512
    ds_write_b64 v4, v[66:67]
    v_cvt_pk_bf16_f32 v68, {r(9)}, {r(9)}
    v_cvt_pk_bf16_f32 v69, {r(8)}, {r(8)}
    v_cvt_pk_bf16_f32 v70, {r(8)}, {r(7)}
    v_cvt_pk_bf16_f32 v71, {r(7)}, {r(7)}
    ds_write_b128 v5, v[68:71]
    v_cvt_pk_bf16_f32 v72, {r(11)}, {r(11)}
    v_cvt_pk_bf16_f32 v73, {r(11)}, v44
    v_cvt_pk_bf16_f32 v74, {r(10)}, {r(10)}
    v_mov_b32 v75, v74
    ds_write_b128 v6, v[72:75] offset:512
    v_cvt_pk_bf16_f32 v76, {r(13)}, {r(13)}
    v_cvt_pk_bf16_f32 v77, {r(13)}, v45
    v_cvt_pk_bf16_f32 v78, {r(12)}, {r(12)}
    v_mov_b32 v79, v78
    ds_write_b128 v6, v[76:79]
    s_setprio 0
    """)
    a("W_start:")
    CA, CB, CP = 152, 192, [224, 240]
    Q = [4, 8]; S = [32, 48]; O = [64, 80]; NM = [96, 112]; KB = 128; WO = 160
    a(f"""
    v_lshlrev_b32 v1, 4, v0
    v_and_b32 v2, 31, v0             ; b / n
    v_lshrrev_b32 v3, 5, v0          ; hi
    s_mul_i32 s28, s68, 8576
    s_lshl_b32 s29, s67, 10          ; kq*32 steps*32B
    s_add_u32 s28, s28, s29
    s_add_u32 s28, s28, {RL}
    v_lshlrev_b32 v12, 3, v3
    v_sub_u32 v12, v12, v2
    v_add_u32 v12, 31, v12           ; i0 = 31 - b + 8hi
    v_and_b32 v13, 1, v12
    v_lshrrev_b32 v12, 1, v12
    v_lshlrev_b32 v12, 2, v12
    v_mul_u32_u24 v13, 4288, v13
    v_add3_u32 v12, v12, v13, s28    ; A' addr
    v_add_u32 v13, 512, v12
    s_mul_i32 s28, s68, 5120
    s_mul_i32 s29, s67, {8*144}
    s_add_u32 s28, s28, s29
    s_add_u32 s28, s28, {UL - 31*144}
    v_mul_u32_u24 v14, 144, v2
    v_lshl_add_u32 v14, v3, 4, v14
    v_add_u32 v14, s28, v14          ; B addr
    s_lshl_b32 s32, s67, 3
    s_sub_u32 s32, 31, s32
    s_lshr_b32 s28, s63, 1
    s_lshl_b32 s28, s28, 8
    s_add_u32 s28, s28, {FKV}
    v_lshl_add_u32 v15, v0, 2, s28
    s_lshl_b32 s33, s68, 11
    s_bfe_u32 s28, s3, 0x10001
    s_lshl_b32 s28, s28, 16
    s_add_u32 s33, s33, s28
    s_and_b32 s28, s3, 1
    s_lshl_b32 s28, s28, 10
    s_add_u32 s33, s33, s28
    s_lshl_b32 s34, s63, 17
    s_add_u32 s34, s34, s33
    s_add_u32 s34, s34, {KV}
    ; Q offsets
    s_lshl_b32 s35, s64, 3
    s_lshl_b32 s28, s67, 1
    s_add_u32 s35, s35, s28
    s_add_u32 s35, s35, s68
    s_lshl_b32 s36, s63, 16
    s_lshl_b32 s28, s35, 10
    s_add_u32 s36, s36, s28
    s_xor_b32 s37, s36, 1024
    s_mov_b32 s38, 0
    """)
    for r in range(CB, CB+32): a(f"v_mov_b32 v{r}, 0")
    FLAG_IT = OPT.get("flagit", 0)
    def kvflag():
        _lab[0] += 1; L = f"KF{_lab[0]}"
        a(f"s_cmp_ge_u32 s3, 4\ns_cbranch_scc1 {L}\ns_waitcnt vmcnt(0)")
        flag_store(a, 65, 16, 17)
        stamp(a, 5)
        a(f"{L}:")
    if FLAG_IT < 0: kvflag()
    a("s_cmp_lt_u32 s3, 4\ns_cbranch_scc1 W_b\ns_waitcnt vmcnt(0)\nW_b:\ns_waitcnt lgkmcnt(0)\ns_barrier")
    stamp(a, 6); stamp(a, 11, 1); stamp(a, 11, 2)
    def aload(sig):
        reg = CA + 4*(sig % 10)
        base, off = (12, 8*sig) if 8*sig + 3 <= 255 else (13, 8*sig - 128)
        a(f"ds_read2_b32 {vr(reg,2)}, v{base} offset0:{off} offset1:{off+1}")
        a(f"ds_read2_b32 {vr(reg+2,2)}, v{base} offset0:{off+2} offset1:{off+3}")
    def cloads(it):
        a("s_lshl_b32 exec_lo, -1, s32\ns_lshl_b32 exec_hi, -1, s32")
        for s in range(4): a(f"ds_read_b128 {vr(CB+16*(it&1)+4*s,4)}, v14 offset:{it*144+32*s}")
        a("s_mov_b64 exec, -1\ns_sub_u32 s32, s32, 1")
        for s in range(4): aload(4*it + 2 + s)
    def kv_issue():
        a(f"buffer_load_dwordx4 {vr(Q[0],4)}, v1, s[16:19], s36 offen sc1\nbuffer_load_dwordx4 {vr(Q[1],4)}, v1, s[16:19], s37 offen sc1")
        a("s_mov_b32 m0, s33")
        for r in range(8):
            a("buffer_load_dwordx4 v1, s[16:19], s34 offen sc1 lds")
            a("s_add_u32 s34, s34, 4096\ns_add_u32 m0, m0, 4096")
    aload(0); aload(1)
    cloads(0)
    POLL0 = OPT.get("poll0", 2)
    for it in range(8):
        a("s_waitcnt lgkmcnt(0)")
        if it < 7: cloads(it+1)
        for s in range(4):
            sig = 4*it + s
            first = (it == 0 and s == 0)
            a(f"v_mfma_f32_32x32x16_bf16 {vr(CP[1],16)}, {vr(CA+4*(sig%10),4)}, {vr(CB+16*(it&1)+4*s,4)}, {'0' if first else vr(CP[1],16)}")
            a(f"v_mfma_f32_32x32x16_bf16 {vr(CP[0],16)}, {vr(CA+4*((sig+2)%10),4)}, {vr(CB+16*(it&1)+4*s,4)}, {'0' if first else vr(CP[0],16)}")
        if it == FLAG_IT: kvflag()
        if it == 1:
            a(f"""
            v_mov_b32 v24, 0xdddd
            s_mov_b32 s30, 0x0000ffff
            s_mov_b32 s31, 0x0000ffff
            v_mov_b32 v25, 0x3f803f80
            v_and_b32 v26, 0x1b, v0
            v_cmp_eq_u32 vcc, 16, v26
            v_cndmask_b32 v25, 0, v25, vcc
            """)
            for r in range(KB, KB+24): a(f"v_mov_b32 v{r}, v25")
        if it == 2:
            for r in range(O[0], O[0]+32): a(f"v_mov_b32 v{r}, 0")
        if it == 3:
            for r in range(NM[0], NM[0]+32): a(f"v_mov_b32 v{r}, 0")
        if it == POLL0:
            a("buffer_load_dword v16, v15, s[16:19], 0 offen sc1")
        elif it > POLL0:
            a(f"""
            s_cmp_lg_u32 s38, 0
            s_cbranch_scc1 W_p{it}
            s_waitcnt vmcnt(0)
            v_cmp_ne_u32 vcc, s60, v16
            s_cbranch_vccnz W_r{it}
            s_mov_b32 s38, {it}
            s_branch W_issue
            W_r{it}:
            buffer_load_dword v16, v15, s[16:19], 0 offen sc1
            W_p{it}:
            """)
    stamp(a, 7)
    a(f"""
    s_lshl_b32 s28, s68, 16
    s_lshl_b32 s29, s67, 11
    s_add_u32 s28, s28, s29
    s_add_u32 s28, s28, 32768
    v_add_u32 v17, s28, v1
    s_lshl_b32 s28, s68, 16
    s_lshl_b32 s29, s67, 13
    s_add_u32 s28, s28, s29
    s_add_u32 s28, s28, 32768
    v_add_u32 v18, s28, v1
    """)
    for j in range(4):
        for h in range(2):
            a(f"ds_write_b128 v17, {vr(CP[0]+8*j+4*h,4)} offset:{j*8192+h*1024}")
    a("s_cmp_lg_u32 s38, 0\ns_cbranch_scc1 W_done")
    spin(a, 15, 16, preissued=True)
    a("s_mov_b32 s38, 100\nW_issue:")
    stamp(a, 8)
    kv_issue()
    for it in range(POLL0+1, 8):
        a(f"s_cmp_eq_u32 s38, {it}\ns_cbranch_scc1 W_p{it}")
    a("W_done:")
    a("s_waitcnt vmcnt(6) lgkmcnt(0)\ns_barrier")
    stamp(a, 9)
    for k in range(8): a(f"ds_read_b128 {vr(CB+4*k,4)}, v18 offset:{k*1024}")
    a(f"""
    s_lshl_b32 s28, s68, 16
    v_add_u32 v26, s28, v1
    """)
    def kf(i): return KB + 12*(i % 2)
    def loads(t):
        return [f"ds_read_b128 {vr(kf(t),4)}, v26 offset:{t*2048}", "s_mov_b64 exec, s[30:31]",
                f"ds_read_b128 {vr(kf(t)+4,4)}, v26 offset:{t*2048+1024}", f"ds_read_b128 {vr(kf(t)+8,4)}, v26 offset:{t*2048+1280}", "s_mov_b64 exec, -1"]
    a(f"""
    v_lshlrev_b32 v2, 7, v2
    v_lshl_add_u32 v2, v3, 4, v2     ; n*128 + hi*16
    s_add_u32 s28, s69, s68
    s_lshl_b32 s28, s28, 12
    s_lshl_b32 s29, s67, 5
    s_add_u32 s28, s28, s29
    s_add_u32 s28, s28, {BT}
    s_waitcnt lgkmcnt(0)
    """)
    for r in range(8): a(f"v_add_f32 v{CB+r}, v{CB+r}, v{CB+8+r}\nv_add_f32 v{CB+16+r}, v{CB+16+r}, v{CB+24+r}")
    for r in range(8): a(f"v_add_f32 v{CB+r}, v{CB+r}, v{CB+16+r}")
    for r in range(4): a(f"v_cvt_pk_bf16_f32 v{CB+8+r}, v{CB+2*r}, v{CB+2*r+1}")
    a(f"buffer_store_dwordx4 {vr(CB+8,4)}, v2, s[16:19], s28 offen sc1")
    srd(a, 12, 56, 524288)
    a(f"""
    v_lshrrev_b32 v16, 3, v0
    v_lshlrev_b32 v16, 10, v16
    v_and_b32 v17, 7, v0
    v_lshl_add_u32 v16, v17, 4, v16
    v_add_u32 v17, 7168, v16
    v_add_u32 v18, 14336, v16
    v_add_u32 v19, 21504, v16
    s_lshl_b32 s39, s3, 12
    s_add_u32 s39, s39, {SS}
    v_lshlrev_b32 v20, 9, v3
    v_bfe_u32 v21, v0, 2, 2
    v_lshl_add_u32 v20, v21, 7, v20
    v_bfe_u32 v21, v0, 4, 1
    v_lshl_add_u32 v20, v21, 5, v20
    v_and_b32 v21, 3, v0
    v_lshl_add_u32 v20, v21, 3, v20
    v_add_u32 v20, s39, v20
    s_mov_b32 s70, 0
    B_restart:
    s_lshl_b32 s40, s67, 17
    s_lshl_b32 s28, s64, 7
    s_add_u32 s40, s40, s28
    """)
    for x in loads(0): a(x)
    a("s_waitcnt lgkmcnt(0)")
    a(f"v_mfma_f32_32x32x16_bf16 {vr(S[0],16)}, {vr(kf(0),4)}, {vr(Q[0],4)}, {vr(NM[0],16)}")
    a(".p2align 3")
    slots = [(t, q) for t in range(32) for q in range(2)]
    p1, p2, p3 = 2, 5, 10
    def hook(t):
        if t == 3:
            a("s_waitcnt vmcnt(0)\ns_barrier")
            a("s_cmp_lg_u32 s70, 0\ns_cbranch_scc1 B_nob2\ns_add_u32 m0, s33, 32768")
            for r in range(8):
                a("buffer_load_dwordx4 v1, s[16:19], s34 offen sc1 lds")
                if r < 7: a("s_add_u32 s34, s34, 4096\ns_add_u32 m0, m0, 4096")
            a(f"s_cmp_lg_u32 s3, 0\ns_cbranch_scc1 B_nob2\ns_lshl_b32 s28, s63, 5\ns_lshl_b32 s29, s64, 2\ns_add_u32 s28, s28, s29\ns_add_u32 s28, s28, {FBT}")
            flag_store(a, 28, 22, 23)
            a("B_nob2:")
        if t == 15:
            a("s_waitcnt vmcnt(0)\ns_barrier")
        if t in (8, 12, 18, 22):
            a("s_mov_b32 m0, s39")
            for j in range(4): a(f"buffer_load_dwordx4 v{16+j}, s[12:15], s40 offen offset:{j*1024} lds")
            a("s_add_u32 s40, s40, 32768")
        if t in (11, 16, 21, 25):
            r = (11, 16, 21, 25).index(t)
            a("s_waitcnt vmcnt(0)")
            for hd in range(2):
                for wc in range(2):
                    reg = WO + ((2*r+hd)*2 + wc)*4
                    a(f"ds_read_b64_tr_b16 {vr(reg,2)}, v20 offset:{hd*2048+wc*64}\nds_read_b64_tr_b16 {vr(reg+2,2)}, v20 offset:{hd*2048+1024+wc*64}")
    for n, (t, q) in enumerate(slots):
        cur, nxt = S[n & 1], S[(n+1) & 1]
        e = [f"v_exp_f32 v{cur+k}, v{cur+k}" for k in range(16)]
        for x in e[0:p1]: a(x)
        if n > 0:
            tp, qp = slots[n-1]
            a(f"v_smfmac_f32_32x32x32_bf16 {vr(O[qp],16)}, {vr(kf(tp)+8,4)}, {vr(nxt+8,8)}, v24")
        if q == 0:
            hook(t)
            if t < 31:
                for x in loads(t+1): a(x)
        for x in e[p1:p2]: a(x)
        if n + 1 < len(slots):
            tn, qn = slots[n+1]
            if qn == 0: a("s_waitcnt lgkmcnt(0)")
            a(f"v_mfma_f32_32x32x16_bf16 {vr(nxt,16)}, {vr(kf(tn),4)}, {vr(Q[qn],4)}, {vr(NM[qn],16)}")
        for x in e[p2:p3]: a(x)
        a(f"v_smfmac_f32_32x32x32_bf16 {vr(O[q],16)}, {vr(kf(t)+4,4)}, {vr(cur,8)}, v24")
        for x in e[p3:16]: a(x)
    a(f"v_smfmac_f32_32x32x32_bf16 {vr(O[1],16)}, {vr(kf(31)+8,4)}, {vr(S[1]+8,8)}, v24")
    stamp(a, 10)
    a(f"""
    v_add_u32 v27, s39, v1
    v_xor_b32 v28, 16384, v27
    v_mov_b32 v29, 0
    s_mov_b32 s28, {f32(2.0**60)}
    s_mov_b32 s29, {f32(2.0**-30)}
    """)
    for r in range(8): a(f"v_fma_f32 v29, v{O[0]+r}, 0, v29")
    a(f"v_cmp_nge_f32 s[42:43], s28, v{O[0]+8}\nv_cmp_nle_f32 s[44:45], s29, v{O[0]+8}")
    for k in range(3): a(f"ds_write_b128 v27, {vr(O[1]+4*k,4)} offset:{k*1024}")
    for r in range(8): a(f"v_fma_f32 v29, v{O[1]+r}, 0, v29")
    a(f"""
    v_cmp_nge_f32 s[46:47], s28, v{O[1]+8}
    v_cmp_nle_f32 s[48:49], s29, v{O[1]+8}
    v_cmp_u_f32 vcc, v29, v29
    s_or_b64 s[42:43], s[42:43], s[44:45]
    s_or_b64 s[46:47], s[46:47], s[48:49]
    s_or_b64 vcc, vcc, s[42:43]
    s_or_b64 vcc, vcc, s[46:47]
    s_cselect_b32 s28, 1, 0
    v_mov_b32 v29, s28
    ds_write_b32 v27, v29 offset:3072
    v_and_b32 v30, 7, v0
    v_lshlrev_b32 v30, 12, v30
    v_add_u32 v30, {SS}, v30
    s_waitcnt lgkmcnt(0)
    s_barrier
    ds_read_b32 v29, v30 offset:3072
    """)
    for k in range(3): a(f"ds_read_b128 {vr(S[0]+4*k,4)}, v28 offset:{k*1024}")
    a(f"""
    s_lshl_b32 s28, s35, 15
    s_lshl_b32 s29, s63, 10
    s_add_u32 s28, s28, s29
    s_add_u32 s28, s28, {OF}
    s_lshl_b32 s41, s35, 7
    s_lshl_b32 s29, s63, 2
    s_add_u32 s41, s41, s29
    s_add_u32 s41, s41, {FO}
    s_waitcnt lgkmcnt(0)
    v_cmp_ne_u32 vcc, 0, v29
    v_add_f32 v{O[0]+8}, v{O[0]+8}, v{S[0]+8}
    v_rcp_f32 v31, v{O[0]+8}
    s_cmp_lg_u32 s70, 0
    s_cselect_b64 vcc, 0, vcc
    s_cbranch_vccnz B_fallback
    """)
    for r in range(8): a(f"v_add_f32 v{O[0]+r}, v{O[0]+r}, v{S[0]+r}")
    for r in range(8): a(f"v_mul_f32 v{O[0]+r}, v{O[0]+r}, v31")
    for r in range(4): a(f"v_cvt_pk_bf16_f32 v{S[1]+r}, v{O[0]+2*r}, v{O[0]+2*r+1}")
    a(f"buffer_store_dwordx4 {vr(S[1],4)}, v1, s[16:19], s28 offen sc1")
    OFr, ACC, E, RD, ID, BFr = 128, [32, 48], 64, 80, 112, 120
    a(f"""
    s_lshl_b32 s42, s63, 1
    s_add_u32 s42, s42, s68          ; ttile
    v_and_b32 v2, 31, v0
    v_lshrrev_b32 v3, 5, v0
    s_and_b32 s28, s42, 3
    s_lshl_b32 s28, s28, 10
    s_lshr_b32 s29, s42, 2
    s_lshl_b32 s29, s29, 4
    s_add_u32 s28, s28, s29
    s_add_u32 s28, s28, {FUT}
    v_bfe_u32 v4, v0, 2, 2
    v_lshlrev_b32 v4, 8, v4
    v_and_b32 v5, 3, v0
    v_lshl_add_u32 v4, v5, 2, v4
    v_add_u32 v4, s28, v4
    s_lshl_b32 s28, s64, 7
    s_lshl_b32 s29, s67, 5
    s_add_u32 s28, s28, s29
    s_add_u32 s28, s28, {FBT}
    v_and_b32 v5, 7, v0
    v_lshlrev_b32 v5, 2, v5
    v_add_u32 v6, s28, v5
    v_cmp_gt_u32 vcc, 32, v0
    v_cndmask_b32 v4, v6, v4, vcc
    s_lshl_b32 s28, s42, 7
    s_add_u32 s28, s28, s29
    s_add_u32 s28, s28, {FO}
    v_add_u32 v5, s28, v5
    s_waitcnt vmcnt(0)
    """)
    flag_store(a, 41, 6, 7)
    stamp(a, 11)
    spin(a, 4, 6)
    a(f"""
    v_lshlrev_b32 v6, 2, v2
    s_lshl_b32 s28, s42, 7
    s_add_u32 s28, s28, {GG}
    buffer_load_dword v7, v6, s[16:19], s28 offen sc1
    v_and_b32 v6, 15, v0
    v_lshlrev_b32 v6, 12, v6
    v_lshl_add_u32 v6, v3, 4, v6
    s_lshl_b32 s28, s64, 18
    s_lshl_b32 s29, s67, 16
    s_add_u32 s28, s28, s29
    s_lshl_b32 s29, s42, 6
    s_add_u32 s28, s28, s29
    s_add_u32 s28, s28, {BT}
    buffer_load_dwordx4 {vr(BFr,4)}, v6, s[16:19], s28 offen sc1
    buffer_load_dwordx4 {vr(BFr+4,4)}, v6, s[16:19], s28 offen offset:32 sc1
    buffer_load_dword v8, v5, s[16:19], 0 offen sc1
    v_lshrrev_b32 v9, 3, v2
    v_bfe_u32 v10, v2, 1, 1
    v_lshl_add_u32 v9, v9, 1, v10
    v_bfe_u32 v10, v2, 2, 1
    v_xor_b32 v10, v10, v3
    v_lshl_add_u32 v9, v10, 4, v9
    v_and_b32 v10, 1, v2
    v_lshlrev_b32 v10, 4, v10
    v_mov_b32 v11, 0x3f80
    v_lshlrev_b32 v11, v10, v11
    """)
    for k in range(8): a(f"v_cmp_eq_u32 vcc, {k}, v9\nv_cndmask_b32 v{ID+k}, 0, v11, vcc")
    a(f"""
    s_lshl_b32 s43, s42, 15
    s_lshl_b32 s29, s67, 13
    s_add_u32 s43, s43, s29
    s_add_u32 s43, s43, {OF}
    s_add_u32 s44, s43, 4096
    s_lshl_b32 s28, s68, 16
    s_lshl_b32 s29, s67, 11
    s_add_u32 s28, s28, s29
    v_add_u32 v17, s28, v1
    s_lshl_b32 s28, s68, 16
    s_lshl_b32 s29, s67, 13
    s_add_u32 s28, s28, s29
    v_add_u32 v18, s28, v1
    """)
    srd(a, 20, 54, 2097152)
    spin(a, 5, 8, preissued=True)
    stamp(a, 12)
    for i in range(8):
        a(f"buffer_load_dwordx4 {vr(OFr+4*i,4)}, v1, s[16:19], s{43 + i//4} offen offset:{(i%4)*1024} sc1")
    a(f"v_mfma_f32_32x32x16_bf16 {vr(E,16)}, {vr(BFr,4)}, {vr(ID,4)}, 0")
    a(f"v_mfma_f32_32x32x16_bf16 {vr(E,16)}, {vr(BFr+4,4)}, {vr(ID+4,4)}, {vr(E,16)}")
    a(f"""
    v_sub_f32 v8, 1.0, v7
    v_cvt_pk_bf16_f32 v8, v8, v8
    v_lshlrev_b32 v8, 16, v8
    v_lshlrev_b32 v9, 10, v2
    v_lshl_add_u32 v9, v3, 4, v9
    s_lshl_b32 s28, s42, 15
    s_lshl_b32 s29, s64, 7
    s_add_u32 s28, s28, s29
    s_lshl_b32 s29, s67, 5
    s_add_u32 s28, s28, s29
    """)
    for r in range(8): a(f"v_mul_f32 v{E+r}, v{E+r}, v8")
    for i in range(8):
        a(f"s_waitcnt vmcnt({7-i})")
        for wc in range(2):
            a(f"v_mfma_f32_32x32x16_bf16 {vr(ACC[wc],16)}, {vr(WO+(2*i+wc)*4,4)}, {vr(OFr+4*i,4)}, {'0' if i == 0 else vr(ACC[wc],16)}")
    for j in range(4):
        for h in range(2):
            a(f"ds_write_b128 v17, {vr(ACC[0]+8*j+4*h,4)} offset:{j*8192+h*1024}")
    a("s_waitcnt lgkmcnt(0)\ns_barrier")
    for k in range(8): a(f"ds_read_b128 {vr(RD+4*k,4)}, v18 offset:{k*1024}")
    a("s_waitcnt lgkmcnt(4)")
    for r in range(8): a(f"v_add_f32 v{RD+r}, v{RD+r}, v{RD+8+r}")
    a("s_waitcnt lgkmcnt(0)")
    for r in range(8): a(f"v_add_f32 v{RD+16+r}, v{RD+16+r}, v{RD+24+r}")
    for r in range(8): a(f"v_add_f32 v{RD+r}, v{RD+r}, v{RD+16+r}")
    for r in range(8): a(f"v_fma_f32 v{RD+r}, v{RD+r}, v7, v{E+r}")
    for r in range(4): a(f"v_cvt_pk_bf16_f32 v{12+r}, v{RD+2*r}, v{RD+2*r+1}")
    a(f"""
    v_permlane32_swap_b32 v12, v14
    v_permlane32_swap_b32 v13, v15
    buffer_store_dwordx4 v[12:15], v9, s[20:23], s28 offen
    s_or_b32 s28, s2, s3
    s_cmp_lg_u32 s28, 0
    s_cbranch_scc1 L_fin
    s_mov_b32 s28, {FL}
    """)
    flag_store(a, 28, 6, 7)
    a("L_fin:")
    if STAMP: a("s_waitcnt vmcnt(0)")
    stamp_flush(a)
    a("L_end:\ns_endpgm")
    a(f"""
    B_fallback:
    s_barrier
    s_mov_b32 s70, 1
    s_mov_b32 s28, 64
    v_mov_b32 v27, v1
    v_mov_b32 v28, 0xff800000
    v_mov_b32 v29, 0xff800000
    B_maxloop:
    ds_read_b128 {vr(KB,4)}, v27
    v_add_u32 v27, 2048, v27
    s_waitcnt lgkmcnt(0)
    v_mfma_f32_32x32x16_bf16 {vr(S[0],16)}, {vr(KB,4)}, {vr(Q[0],4)}, 0
    v_mfma_f32_32x32x16_bf16 {vr(S[1],16)}, {vr(KB,4)}, {vr(Q[1],4)}, 0
    s_sub_u32 s28, s28, 1
    s_cmp_lg_u32 s28, 0
    """)
    for q in range(2):
        for k in range(8): a(f"v_max3_f32 v{28+q}, v{28+q}, v{S[q]+2*k}, v{S[q]+2*k+1}")
    a("s_cbranch_scc1 B_maxloop")
    for q in range(2):
        a(f"v_mov_b32 v30, v{28+q}\nv_permlane32_swap_b32 v{28+q}, v30\nv_max_f32 v30, v{28+q}, v30\nv_sub_f32 v30, 0, v30")
        for r in range(16): a(f"v_mov_b32 v{NM[q]+r}, v30")
    for r in range(O[0], O[0]+32): a(f"v_mov_b32 v{r}, 0")
    a("s_branch B_restart")

def main(out):
    a = Asm()
    build(a)
    for b in a.check_branches(): print("BRANCH HAZARD:", b)
    K = NAME + "_kernel"
    head = f"; generated by work/gen/gen2.py\n; @launch grid=(256,1,1) block=(512,1,1) lds=163840\n" + '.amdgcn_target "amdgcn-amd-amdhsa--gfx950"\n.text\n'
    tail = f'''.section .rodata,"a"
.p2align 6
.amdhsa_kernel {K}
  .amdhsa_next_free_vgpr 256
  .amdhsa_next_free_sgpr {102 if STAMP else 72}
  .amdhsa_accum_offset 256
  .amdhsa_group_segment_fixed_size 0
  .amdhsa_kernarg_size 128
  .amdhsa_user_sgpr_count 2
  .amdhsa_user_sgpr_kernarg_segment_ptr 1
  .amdhsa_system_sgpr_workgroup_id_x 1
.end_amdhsa_kernel
'''
    open(out, "w").write(head + a.text() + tail)

if __name__ == "__main__":
    if "--stamp" in sys.argv:
        STAMP = True; sys.argv.remove("--stamp")
    for x in list(sys.argv):
        if x.startswith("-D"):
            k, _, v = x[2:].partition("="); OPT[k] = int(v) if v else 1; sys.argv.remove(x)
    main(sys.argv[1] if len(sys.argv) > 1 else f"cdna_kernels/{NAME}.s")
```

```python
import sys, struct, math
from asmlib import Asm

NAME = "gated_mix__softmax_full_mha__ssm_conv_s4__prompt"
def f32(x): return "0x%08x" % struct.unpack("<I", struct.pack("<f", x))[0]
LOG2E = 1.4426950408889634
QF, KV, OF, BT, UT, GG = 0x000000, 0x200000, 0x600000, 0x800000, 0xC00000, 0xF00000
FL = 0xF10000
FUT, FKV, FBT, FO = FL + 0x1000, FL + 0x2000, FL + 0x3000, FL + 0x4000
ST = 0xF80000
WS_BYTES = 0x1000000
STAMP = False
OPT = {}
SPIN = 200000

def vr(b, n): return f"v[{b}:{b+n-1}]"
def srd(a, d, base, nbytes):
    a(f"s_mov_b32 s{d}, s{base}\ns_mov_b32 s{d+1}, s{base+1}\ns_mov_b32 s{d+2}, {hex(nbytes)}\ns_mov_b32 s{d+3}, 0x00020000")
NST = 14
def stamp(a, k, mode=None):
    if mode != OPT.get("st") and k not in (0, NST-1): return
    if STAMP: a(f"{'s_memtime' if OPT.get('cyc') else 's_memrealtime'} s[{72+2*k}:{73+2*k}]")
def stamp_flush(a):
    if not STAMP: return
    stamp(a, NST-1)
    a(f"s_lshl_b32 s4, s2, 9\ns_lshl_b32 s5, s3, 6\ns_add_u32 s4, s4, s5\ns_add_u32 s4, s4, {ST}\ns_waitcnt lgkmcnt(0)\ns_mov_b64 exec, 1\nv_mov_b32 v0, 0")
    for k in range(NST):
        a(f"v_mov_b32 v1, s{72+2*k}\nbuffer_store_dword v1, v0, s[16:19], s4 offen offset:{4*k}")

class VM:
    def __init__(self, a): self.a = a; self.n = 0
    def op(self, text):
        self.a(text); self.n += 1; return self.n
    def wait(self, mark, extra=""):
        left = self.n - mark
        assert 0 <= left <= 63, left
        self.a(f"s_waitcnt vmcnt({left}){extra}")

def cmuls(a, jobs):
    for (d, x, y) in jobs:
        a(f"v_pk_mul_f32 {vr(d,2)}, {vr(x,2)}, {vr(y,2)} op_sel:[0,0] op_sel_hi:[0,1]")
    for (d, x, y) in jobs:
        a(f"v_pk_fma_f32 {vr(d,2)}, {vr(x,2)}, {vr(y,2)}, {vr(d,2)} op_sel:[1,1,0] op_sel_hi:[1,0,1] neg_lo:[1,0,0]")

_lab = [0]
def spin(a, vaddr, vtmp, preissued=False):
    _lab[0] += 1; L = f"SP{_lab[0]}"
    a(f"s_mov_b32 s71, {SPIN}")
    if preissued: a(f"s_branch {L}_chk")
    a(f"""
    {L}:
    buffer_load_dword v{vtmp}, v{vaddr}, s[16:19], 0 offen sc1
    {L}_chk:
    s_waitcnt vmcnt(0)
    v_cmp_ne_u32 vcc, s60, v{vtmp}
    s_sub_u32 s71, s71, 1
    s_cselect_b64 vcc, 0, vcc
    s_cbranch_vccnz {L}
    """)

def flag_store(a, soff_sreg, vtmp0, vtmp1):
    a(f"""
    v_mov_b32 v{vtmp0}, 0
    v_mov_b32 v{vtmp1}, s60
    s_mov_b64 exec, 1
    buffer_store_dword v{vtmp1}, v{vtmp0}, s[16:19], s{soff_sreg} offen sc1
    s_mov_b64 exec, -1
    """)

XRING, WRING = 0, 32768
SS = 131072
KGS = SS
UL, RL = SS, SS + 10240
QL = 28672
CA, CB, CP = 152, 192, [224, 240]
Q = [4, 8]; S = [32, 48]; O = [64, 80]; NM = [96, 112]; KB = 128; WO = 160
VN, VH, VA0, VA1, VB = 14, 15, 16, 17, 18
def wsetup():
    t = f"""
    v_and_b32 v{VN}, 31, v0
    v_lshrrev_b32 v{VH}, 5, v0
    s_mul_i32 s42, s68, 8576
    s_lshl_b32 s43, s67, 10
    s_add_u32 s42, s42, s43
    s_add_u32 s42, s42, {RL}
    v_lshlrev_b32 v{VA0}, 3, v{VH}
    v_sub_u32 v{VA0}, v{VA0}, v{VN}
    v_add_u32 v{VA0}, 31, v{VA0}
    v_and_b32 v{VA1}, 1, v{VA0}
    v_lshrrev_b32 v{VA0}, 1, v{VA0}
    v_lshlrev_b32 v{VA0}, 2, v{VA0}
    v_mul_u32_u24 v{VA1}, 4288, v{VA1}
    v_add3_u32 v{VA0}, v{VA0}, v{VA1}, s42
    v_add_u32 v{VA1}, 512, v{VA0}
    s_mul_i32 s42, s68, 5120
    s_mul_i32 s43, s67, {8*144}
    s_add_u32 s42, s42, s43
    s_add_u32 s42, s42, {UL - 31*144}
    v_mul_u32_u24 v{VB}, 144, v{VN}
    v_lshl_add_u32 v{VB}, v{VH}, 4, v{VB}
    v_add_u32 v{VB}, s42, v{VB}
    s_lshl_b32 s44, s67, 3
    s_sub_u32 s44, 31, s44
    s_bfe_u32 s45, s3, 0x10001
    s_lshl_b32 s45, s45, 16
    s_and_b32 s42, s3, 1
    s_lshl_b32 s42, s42, 10
    s_add_u32 s45, s45, s42
    s_lshl_b32 s46, s63, 17
    s_add_u32 s46, s46, s45
    s_add_u32 s46, s46, {KV}"""
    L = [x.strip() for x in t.strip().split("\n")]
    L += [f"v_mov_b32 v{r}, 0" for r in range(CB, CB+32)]
    return L

def rexp_read(a):
    a(f"""
    s_lshr_b32 s42, s67, 1
    s_lshl_b32 s42, s42, 14
    s_add_u32 s42, s42, {KGS}
    v_lshl_add_u32 v1, v0, 4, s42
    """)
    for q in range(8): a(f"ds_read_b128 {vr(224+4*q,4)}, v1 offset:{(q>>2)*8192 + (q&3)*1024}")
    a("s_waitcnt lgkmcnt(0)")
def rexp_addr(a):
    a(f"""
    v_and_b32 v1, 31, v0
    v_lshlrev_b32 v1, 4, v1
    v_lshrrev_b32 v2, 5, v0
    s_lshr_b32 s42, s67, 1
    s_mul_i32 s42, s42, 8576
    s_and_b32 s43, s67, 1
    s_mul_i32 s43, s43, 4284
    s_add_u32 s42, s42, s43
    s_add_u32 s42, s42, {RL}
    v_lshl_add_u32 v60, v2, 3, v1
    v_sub_u32 v60, {2*2044-512}, v60
    v_lshl_add_u32 v61, v2, 9, v1
    v_sub_u32 v61, {2*1528}, v61
    v_lshl_add_u32 v62, v2, 10, v1
    v_sub_u32 v62, {2*760}, v62
    v_add_u32 v60, s42, v60
    v_add_u32 v61, s42, v61
    v_add_u32 v62, s42, v62
    v_lshl_add_u32 v63, v0, 2, s42
    """)
def rexp_calc(a, L):
    D = 224
    r = lambda k: f"v{D+k}"
    a(f"""
    v_and_b32 v1, 1, v0
    v_cmp_eq_u32 vcc, 0, v1
    v_cmp_eq_u32 s[48:49], 0, v0
    """)
    for k in range(15): a(f"v_add_f32 v{D+k}, v{D+k}, v{D+16+k}")
    a(f"""
    v_cndmask_b32 v1, {r(11)}, {r(10)}, vcc
    v_cndmask_b32 v2, {r(13)}, {r(12)}, vcc
    s_cmp_lg_u32 s34, 0
    s_cbranch_scc1 {L}_c1
    v_mov_b32 v80, 0
    v_cvt_pk_bf16_f32 v64, {r(3)}, {r(2)}
    v_cvt_pk_bf16_f32 v65, {r(1)}, {r(0)}
    v_cvt_pk_bf16_f32 v66, {r(6)}, {r(5)}
    v_cvt_pk_bf16_f32 v67, {r(4)}, {r(4)}
    v_cvt_pk_bf16_f32 v68, {r(9)}, {r(9)}
    v_cvt_pk_bf16_f32 v69, {r(8)}, {r(8)}
    v_cvt_pk_bf16_f32 v70, {r(8)}, {r(7)}
    v_cvt_pk_bf16_f32 v71, {r(7)}, {r(7)}
    v_cvt_pk_bf16_f32 v72, {r(11)}, {r(11)}
    v_cvt_pk_bf16_f32 v73, {r(11)}, v1
    v_cvt_pk_bf16_f32 v74, {r(10)}, {r(10)}
    v_mov_b32 v75, v74
    v_cvt_pk_bf16_f32 v76, {r(13)}, {r(13)}
    v_cvt_pk_bf16_f32 v77, {r(13)}, v2
    v_cvt_pk_bf16_f32 v78, {r(12)}, {r(12)}
    v_mov_b32 v79, v78
    s_branch {L}_e
    {L}_c1:
    v_cvt_pk_bf16_f32 v80, {r(0)}, 0
    v_cndmask_b32 v80, 0, v80, s[48:49]
    v_cvt_pk_bf16_f32 v64, {r(14)}, {r(3)}
    v_cvt_pk_bf16_f32 v65, {r(2)}, {r(1)}
    v_cvt_pk_bf16_f32 v66, {r(6)}, {r(6)}
    v_cvt_pk_bf16_f32 v67, {r(5)}, {r(4)}
    v_cvt_pk_bf16_f32 v68, {r(9)}, {r(9)}
    v_cvt_pk_bf16_f32 v69, {r(9)}, {r(8)}
    v_cvt_pk_bf16_f32 v70, {r(8)}, {r(8)}
    v_cvt_pk_bf16_f32 v71, {r(7)}, {r(7)}
    v_cvt_pk_bf16_f32 v72, {r(11)}, {r(11)}
    v_mov_b32 v73, v72
    v_cvt_pk_bf16_f32 v74, v1, {r(10)}
    v_cvt_pk_bf16_f32 v75, {r(10)}, {r(10)}
    v_cvt_pk_bf16_f32 v76, {r(13)}, {r(13)}
    v_mov_b32 v77, v76
    v_cvt_pk_bf16_f32 v78, v2, {r(12)}
    v_cvt_pk_bf16_f32 v79, {r(12)}, {r(12)}
    {L}_e:
    """)
def rexp_write(a):
    a(f"""
    s_cmp_lg_u32 s34, 0
    s_cbranch_scc1 RW_c1
    ds_write_b64 v60, v[64:65] offset:512
    ds_write_b64 v60, v[66:67]
    ds_write_b128 v61, v[68:71]
    ds_write_b128 v62, v[72:75] offset:512
    ds_write_b128 v62, v[76:79]
    s_branch RW_e
    RW_c1:
    ds_write2_b32 v60, v64, v65 offset0:128 offset1:129
    ds_write2_b32 v60, v66, v67 offset0:0 offset1:1
    ds_write2_b32 v61, v68, v69 offset0:0 offset1:1
    ds_write2_b32 v61, v70, v71 offset0:2 offset1:3
    ds_write2_b32 v62, v72, v73 offset0:128 offset1:129
    ds_write2_b32 v62, v74, v75 offset0:130 offset1:131
    ds_write2_b32 v62, v76, v77 offset0:0 offset1:1
    ds_write2_b32 v62, v78, v79 offset0:2 offset1:3
    RW_e:
    s_mov_b32 exec_hi, 0
    ds_write_b32 v63, v80 offset:4096
    s_mov_b64 exec, -1
    """)

def build(a):
    K = NAME + "_kernel"
    a(f".globl {K}\n.p2align 8\n.type {K},@function\n{K}:")
    a("s_cmp_ge_u32 s2, 256\ns_cbranch_scc1 L_end")
    stamp(a, 0)
    a(f"""
    s_load_dwordx4 s[4:7], s[0:1], 0
    s_load_dwordx8 s[36:43], s[0:1], 32
    s_load_dwordx8 s[44:51], s[0:1], 64
    s_load_dwordx2 s[58:59], s[0:1], 120
    s_load_dwordx4 s[52:55], s[0:1], 96
    s_load_dwordx2 s[56:57], s[0:1], 16
    s_getpc_b64 s[24:25]
    A_pc:
    v_lshlrev_b32 v1, 7, v0
    v_min_u32 v1, L_codeend-A_pc-4, v1
    global_load_dword v255, v1, s[24:25]
    v_lshrrev_b32 v1, 6, v0
    v_and_b32 v0, 63, v0
    v_readfirstlane_b32 s3, v1
    s_and_b32 s22, s2, 7             ; xcd
    s_lshr_b32 s23, s2, 3            ; i
    s_and_b32 s25, s23, 3
    s_lshr_b32 s64, s23, 2
    s_and_b32 s61, s22, 1
    s_lshl_b32 s61, s61, 2
    s_add_u32 s61, s61, s25          ; hq
    s_lshr_b32 s62, s22, 1
    s_lshl_b32 s62, s62, 3
    s_add_u32 s62, s62, s64
    s_lshl_b32 s63, s22, 2
    s_add_u32 s63, s63, s25
    s_and_b32 s67, s3, 3             ; w4
    s_lshr_b32 s68, s3, 2            ; hf
    s_lshl_b32 s69, s63, 4
    s_lshl_b32 s26, s64, 1
    s_add_u32 s69, s69, s26
    s_lshr_b32 s33, s67, 1
    s_and_b32 s34, s67, 1
    s_cmp_ge_u32 s3, 4
    s_cbranch_scc1 A_helper
    s_add_u32 s35, s69, s33          ; channel d
    s_lshl_b32 s28, s35, 8
    s_lshl_b32 s29, s34, 7
    s_add_u32 s28, s28, s29
    v_lshl_add_u32 v1, v0, 1, s28
    s_lshl_b32 s29, s35, 1
    v_mov_b32 v2, s29
    """)
    vmc = VM(a)
    for r in range(20, 28): a(f"v_mov_b32 v{r}, 0")
    a("s_waitcnt lgkmcnt(0)")
    vmc.op("global_load_short_d16_hi v26, v2, s[48:49]")
    for k in range(2): m_p1 = vmc.op(f"global_load_short_d16_hi v{20+k}, v1, s[{36+2*k}:{37+2*k}]")
    for k in range(2, 6): vmc.op(f"global_load_short_d16_hi v{20+k}, v1, s[{36+2*k}:{37+2*k}]")
    m_par = vmc.op("global_load_short_d16_hi v27, v2, s[50:51]")
    a("s_branch A_compute")

    a("A_helper:")
    vm = VM(a)
    a(f"""
    s_lshl_b32 s20, s62, 16
    s_lshl_b32 s21, s61, 7
    s_lshl_b32 s26, s67, 5
    s_add_u32 s26, s26, s21
    s_add_u32 s26, s26, s20
    s_lshl_b32 s27, s67, 11          ; w4*2048
    s_add_u32 m0, s27, {3*8192}
    v_lshrrev_b32 v1, 1, v0
    v_lshlrev_b32 v5, 10, v1
    v_and_b32 v2, 1, v0
    v_lshl_add_u32 v5, v2, 4, v5
    v_add_u32 v6, 31744, v5
    s_lshl_b32 s35, s25, 1
    s_add_u32 s35, s35, s62
    s_lshr_b32 s24, s61, 2
    s_add_u32 s35, s35, s24
    s_and_b32 s35, s35, 7
    s_lshl_b32 s24, s67, 14
    s_add_u32 s20, s20, s24
    s_mul_i32 s24, s67, 49152
    s_add_u32 s21, s21, s24
    s_mul_i32 s32, s67, 6144
    v_lshrrev_b32 v1, 3, v0
    v_and_b32 v3, 7, v0
    v_lshrrev_b32 v4, 4, v0
    v_xor_b32 v7, v3, v4
    v_lshlrev_b32 v2, 10, v1
    v_lshl_add_u32 v8, v7, 4, v2
    v_xor_b32 v9, 64, v8
    v_add_u32 v9, 7168, v9
    v_and_b32 v4, 1, v4
    v_lshlrev_b32 v4, 2, v4
    v_xor_b32 v7, v3, v4
    v_mul_u32_u24 v2, 3072, v1
    v_lshl_add_u32 v12, v7, 4, v2
    s_waitcnt lgkmcnt(0)
    """)
    srd(a, 8, 4, 2097152)
    vm.op("buffer_load_dwordx4 v5, s[8:11], s26 offen lds")
    m_ut = vm.op("buffer_load_dwordx4 v6, s[8:11], s26 offen offset:1024 lds")
    srd(a, 12, 6, 1572864)
    def dma(c):
        slot = c & 3
        a(f"s_lshl_b32 s28, s35, 7\ns_add_u32 s28, s28, s20\ns_add_u32 m0, s27, {slot*8192}\ns_mul_i32 s30, s35, 196608")
        for i in range(2): vm.op(f"buffer_load_dwordx4 v{8+i}, s[8:11], s28 offen offset:{i*1024} lds")
        a(f"s_add_u32 s30, s30, s21\ns_add_u32 m0, s32, {WRING + slot*24576}\ns_add_u32 s35, s35, 1")
        for m in range(3): vm.op(f"buffer_load_dwordx4 v12, s[12:15], s30 offen offset:{m*1024} lds")
        a(f"s_add_u32 s30, s30, 24576\ns_add_u32 m0, s32, {WRING + slot*24576 + 3072}\ns_and_b32 s35, s35, 7")
        for m in range(3): mk = vm.op(f"buffer_load_dwordx4 v12, s[12:15], s30 offen offset:{m*1024} lds")
        return mk
    mc = {}
    NPRE = OPT.get("npre", 1)
    for c in range(NPRE): mc[c] = dma(c)
    a(f"s_mov_b32 s24, {FL}\ns_load_dword s60, s[58:59], s24")
    srd(a, 16, 58, WS_BYTES)
    a(f"""
    s_add_u32 s24, s27, {3*8192}
    v_lshrrev_b32 v4, 4, v0          ; g
    v_and_b32 v7, 15, v0             ; i
    v_lshlrev_b32 v5, 8, v4
    v_lshl_add_u32 v5, v7, 3, v5
    v_add_u32 v5, s24, v5
    v_lshlrev_b32 v6, 7, v7
    v_lshl_add_u32 v6, v4, 4, v6
    v_add_u32 v6, s24, v6
    v_lshl_add_u32 v10, v0, 4, s24
    v_lshlrev_b32 v2, 12, v1
    v_lshl_add_u32 v11, v3, 4, v2    ; UT store voff
    s_lshl_b32 s65, s61, 2
    s_add_u32 s65, s65, s67
    s_lshl_b32 s24, s65, 16
    s_lshl_b32 s25, s62, 7
    s_add_u32 s24, s24, s25
    s_add_u32 s24, s24, {UT}
    s_add_u32 s25, s24, 32768
    s_lshl_b32 s65, s65, 7
    s_lshl_b32 s26, s62, 2
    s_add_u32 s65, s65, s26
    s_add_u32 s65, s65, {FUT}
    s_waitcnt lgkmcnt(0)
    s_mul_i32 s60, s60, 0x9E3779B1
    s_add_u32 s60, s60, 0x7F4A7C15
    """)
    vm.wait(m_ut)
    stamp(a, 1); stamp(a, 1, 1)
    for k in range(4): a(f"ds_read_b64_tr_b16 {vr(64+2*k,2)}, v5 offset:{(k>>1)*1024 + (k&1)*128}")
    a("s_waitcnt lgkmcnt(0)\nds_write_b128 v6, v[64:67]\nds_write_b128 v6, v[68:71] offset:64\nds_read_b128 v[72:75], v10\nds_read_b128 v[76:79], v10 offset:1024\ns_waitcnt lgkmcnt(1)")
    vm.op("buffer_store_dwordx4 v[72:75], v11, s[16:19], s24 offen sc1")
    a("s_waitcnt lgkmcnt(0)")
    m_us = vm.op("buffer_store_dwordx4 v[76:79], v11, s[16:19], s25 offen sc1")
    for c in range(NPRE, 3): mc[c] = dma(c)
    vm.wait(m_us)
    flag_store(a, 65, 56, 57); vm.n += 1
    stamp(a, 2)
    mc[3] = dma(3)
    a(f"""
    s_lshl_b32 s31, s63, 6
    s_lshl_b32 s24, s64, 3
    s_add_u32 s31, s31, s24
    s_lshl_b32 s24, s67, 1
    s_add_u32 s31, s31, s24
    s_lshl_b32 s24, s31, 10
    v_lshlrev_b32 v3, 5, v0
    v_and_b32 v4, 0x3ff, v3
    """)
    vm.op("buffer_load_dwordx4 v[28:31], v3, s[8:11], s24 offen")
    vm.op("buffer_load_dwordx4 v[32:35], v3, s[8:11], s24 offen offset:16")
    vm.op("global_load_dwordx4 v[36:39], v4, s[52:53]")
    vm.op("global_load_dwordx4 v[40:43], v4, s[52:53] offset:16")
    for x in wsetup(): a(x)
    a(f"""
    s_lshl_b32 s24, s63, 7
    s_add_u32 s24, s24, {FUT}
    v_lshl_add_u32 v58, v{VN}, 2, s24
    s_lshr_b32 s24, s63, 1
    s_lshl_b32 s24, s24, 8
    s_add_u32 s24, s24, {FKV}
    v_lshl_add_u32 v19, v0, 2, s24
    s_lshl_b32 s24, s34, 7
    """)
    for k in range(3):
        a(f"v_add_u32 v1, s24, v0\nv_add_u32 v1, {64*k}, v1\nv_mul_u32_u24 v2, 7282, v1\nv_lshrrev_b32 v2, 16, v2\nv_sub_u32 v1, v1, v2\nv_lshlrev_b32 v{20+k}, 4, v1")
    rexp_addr(a)
    for c in range(8):
        vm.wait(mc[c])
        stamp(a, 2+c, 1)
        a("s_barrier")
        if c == 0:
            stamp(a, 3)
            rexp_read(a)
        if 1 <= c <= 4: mc[c+3] = dma(c+3)
        if c == 4: vm.op("buffer_load_dword v59, v58, s[16:19], 0 offen sc1")
        if c == 5: rexp_calc(a, "RA")
        if c == 6:
            a("v_mov_b32 v54, 0")
            for k in range(8): a(f"v_dot2c_f32_bf16 v54, v{28+k}, v{36+k}")
    spin(a, 58, 59, preissued=True)
    a(f"""
    s_add_u32 s24, s69, s33
    s_lshl_b32 s29, s24, 12
    s_add_u32 s29, s29, {UT}
    s_mul_i32 s24, s33, 5120
    s_lshl_b32 s25, s34, 11
    s_add_u32 s24, s24, s25
    s_add_u32 m0, s24, {UL}
    """)
    for k in range(3):
        a(f"buffer_load_dwordx4 v{20+k}, s[16:19], s29 offen sc1 lds")
        if k < 2: a("s_add_u32 m0, m0, 1024")
    stamp(a, 4); stamp(a, 10, 1)
    rexp_write(a)
    for sh in (1, 2, 4, 8): a(f"v_add_f32_dpp v54, v54, v54 row_shr:{sh} row_mask:0xf bank_mask:0xf bound_ctrl:0")
    a("v_add_f32_dpp v54, v54, v54 row_bcast:15 row_mask:0xa bank_mask:0xf")
    a(f"""
    v_cvt_pk_bf16_f32 v54, v54, v54
    v_lshlrev_b32 v54, 16, v54
    v_mul_f32 v54, {f32(-LOG2E)}, v54
    v_exp_f32 v54, v54
    v_add_f32 v54, 1.0, v54
    v_rcp_f32 v54, v54
    v_cvt_pk_bf16_f32 v54, v54, v54
    v_lshlrev_b32 v54, 16, v54
    v_lshlrev_b32 v55, 2, v{VH}
    s_lshl_b32 s31, s31, 2
    s_add_u32 s31, s31, {GG}
    v_lshlrev_b32 v1, 4, v0
    s_waitcnt vmcnt(0)
    s_mov_b32 exec_lo, 0x80000000
    s_mov_b32 exec_hi, 0x80000000
    buffer_store_dword v54, v55, s[16:19], s31 offen sc1
    s_mov_b64 exec, -1
    s_setprio 1
    s_branch W_start
    """)

    a("A_compute:")
    vm = vmc
    a(f"s_mov_b32 s24, {FL}\ns_load_dword s60, s[58:59], s24")
    srd(a, 16, 58, WS_BYTES)
    a(f"""
    v_and_b32 v3, 3, v0
    v_lshrrev_b32 v4, 5, v0
    v_bfe_u32 v2, v0, 2, 2
    v_bfe_u32 v5, v0, 4, 1
    v_lshlrev_b32 v1, 5, v5
    v_lshl_add_u32 v6, v3, 3, v1            ; (g&1)*32 + (i&3)*8
    v_lshl_add_u32 v1, v4, 9, v6
    v_lshl_add_u32 v13, v2, 6, v1
    s_lshl_b32 s66, s67, 13
    s_add_u32 s66, s66, {KGS}
    v_bfe_u32 v1, v0, 1, 2
    v_lshlrev_b32 v1, 4, v1
    v_lshl_add_u32 v1, v0, 6, v1
    v_add_u32 v14, s66, v1
    v_xor_b32 v15, 16, v14
    v_xor_b32 v16, 32, v14
    v_xor_b32 v17, 48, v14
    v_bfe_u32 v7, v0, 3, 1
    v_lshlrev_b32 v1, 4, v7
    v_xor_b32 v18, v13, v1
    v_add_u32 v18, s66, v18
    v_xor_b32 v19, 32, v18
    v_add_u32 v19, 256, v19
    v_lshl_add_u32 v3, v0, 4, s66
    v_mul_u32_u24 v1, 3072, v4
    v_lshl_add_u32 v1, v2, 7, v1
    v_xor_b32 v7, s33, v7
    v_lshl_add_u32 v1, v7, 6, v1
    v_add_u32 v1, v1, v6
    v_add_u32 v12, {WRING}, v1
    v_add_u32 v13, {WRING + 49152}, v1
    s_lshl_b32 s29, s34, 12
    v_and_b32 v1, 31, v0
    v_bfe_u32 v2, v0, 1, 3
    v_xor_b32 v2, v2, v4
    v_lshlrev_b32 v1, 7, v1
    v_lshl_add_u32 v1, v2, 4, v1
    v_add_u32 v8, s29, v1
    v_xor_b32 v9, 32, v8
    v_xor_b32 v10, 64, v8
    v_xor_b32 v11, 96, v8
    s_waitcnt lgkmcnt(0)
    s_mul_i32 s60, s60, 0x9E3779B1
    s_add_u32 s60, s60, 0x7F4A7C15
    """)
    vm.wait(m_p1)
    stamp(a, 1); stamp(a, 1, 1)
    a(f"""
    v_mul_f32 v26, {f32(LOG2E)}, v26
    v_exp_f32 v26, v26
    v_cvt_pk_bf16_f32 v26, v26, v26
    v_lshlrev_b32 v26, 16, v26
    v_mul_f32 v20, v26, v20
    v_mul_f32 v21, v26, v21
    v_mul_f32 v20, {f32(LOG2E)}, v20
    v_mul_f32 v21, {f32(1/(2*math.pi))}, v21
    """)
    P = lambda j: 64 + 2*j
    zs = ((P(1), 8.0, 36), (44, 1.0, 38), (48, 256.0, 40))
    for (z, e, t) in zs: a(f"v_mul_f32 v{t}, {f32(e)}, v20\nv_mul_f32 v{t+1}, {f32(e)}, v21")
    for (z, e, t) in zs: a(f"v_exp_f32 v{t}, v{t}\nv_fract_f32 v{t+1}, v{t+1}")
    for (z, e, t) in zs: a(f"v_cos_f32 v{z}, v{t+1}\nv_sin_f32 v{z+1}, v{t+1}")
    for (z, e, t) in zs: a(f"v_pk_mul_f32 {vr(z,2)}, {vr(z,2)}, {vr(t,2)} op_sel:[0,0] op_sel_hi:[1,0]")
    a(f"v_mov_b32 v{P(0)}, 1.0\nv_mov_b32 v{P(0)+1}, 0")
    T = lambda i: 160 + 2*i
    Z2, Z4 = 178, 180
    Z = {256: 48, 512: 182, 768: 184, 1024: 186, 1280: 188, 1536: 190, 1792: 192}
    vm.wait(m_par)
    cmuls(a, [(P(2), P(1), P(1)), (T(0), 22, 24), (Z2, 44, 44), (Z[512], 48, 48)])
    a(f"v_pk_mul_f32 {vr(T(0),2)}, {vr(T(0),2)}, v[26:27] op_sel:[0,0] op_sel_hi:[1,0]")
    cmuls(a, [(P(3), P(1), P(2)), (P(4), P(2), P(2)), (Z4, Z2, Z2), (Z[768], Z[512], 48), (Z[1024], Z[512], Z[512]), (T(1), T(0), 44), (T(8), T(0), P(1)), (T(2), T(0), Z2)])
    cmuls(a, [(P(4+j), P(j), P(4)) for j in (1, 2, 3, 4)] + [(T(3), T(1), Z2), (Z[1280], Z[1024], 48), (Z[1536], Z[1024], Z[512]), (Z[1792], Z[1024], Z[768])])
    cmuls(a, [(P(8+j), P(j), P(8)) for j in range(1, 9)] + [(T(4+i), T(i), Z4) for i in range(4)])
    tmp = [28, 52]
    wn = [0]
    def wr_chunk(c, srcs, neg_im):
        n = "-" if neg_im else ""
        t = tmp[wn[0] & 1]; wn[0] += 1
        for k in range(4): a(f"v_cvt_pk_bf16_f32 v{t+k}, v{srcs[2*k]}, v{srcs[2*k+1]}")
        for k in range(4): a(f"v_cvt_pk_bf16_f32 v{t+4+k}, {n}v{srcs[2*k]+1}, {n}v{srcs[2*k+1]+1}")
        a(f"ds_write_b128 v{14+c}, {vr(t,4)}\nds_write_b128 v{14+c}, {vr(t+4,4)} offset:4096")
    wr_chunk(0, [P(j) for j in range(8)], True)
    wr_chunk(1, [P(j) for j in range(8, 16)], True)
    cmuls(a, [(P(16+j), P(j), P(16)) for j in range(1, 16)])
    wr_chunk(2, [P(j) for j in range(16, 24)], True)
    wr_chunk(3, [P(j) for j in range(24, 32)], True)
    cols = [0,1,2,3,4,5,6,7, 256,258,260,512, 260,262,264,768, 516,520,1024,1032, 772,776,1536,1544, 1280,1288,4,0, 1792,1800,8,0]
    loc = {i: T(i) for i in range(9)}
    jobs = []; nxt = 64
    for al in cols:
        if al not in loc:
            loc[al] = nxt; jobs.append((nxt, T(al % 256), Z[al - al % 256])); nxt += 2
    cmuls(a, jobs[:10])
    BF = 128
    a("s_waitcnt lgkmcnt(0)")
    for s in range(8):
        a(f"ds_read_b64_tr_b16 {vr(BF+4*s,2)}, v18 offset:{s*1024}\nds_read_b64_tr_b16 {vr(BF+4*s+2,2)}, v19 offset:{s*1024}")
    cmuls(a, jobs[10:])
    for c in range(4): wr_chunk(c, [loc[al] for al in cols[8*c:8*c+8]], False)
    AFr, D = 64, 224
    for s in range(8):
        a(f"ds_read_b64_tr_b16 {vr(AFr+4*s,2)}, v18 offset:{s*1024}\nds_read_b64_tr_b16 {vr(AFr+4*s+2,2)}, v19 offset:{s*1024}")
    for s in range(8):
        a(f"s_waitcnt lgkmcnt({14-2*s})")
        a(f"v_mfma_f32_32x32x16_bf16 {vr(D,16)}, {vr(AFr+4*s,4)}, {vr(BF+4*s,4)}, {'0' if s == 0 else vr(D,16)}")
    a(f"s_xor_b32 exec_lo, s34, 1\ns_mov_b32 exec_hi, 0\nv_add_f32 v{D}, v{D}, v27\ns_mov_b64 exec, -1")
    for q in range(4): a(f"ds_write_b128 v3, {vr(D+4*q,4)} offset:{q*1024}")
    F = [28, 44, 112, 128]
    AQ, AK, AV = 64, 80, 96
    def rd(g):
        f = F[g % 4]; slot = (g >> 2) & 3; s = g & 3
        L = [f"ds_read_b128 {vr(f,4)}, v{8+s} offset:{slot*8192}"]
        for m in (1, 2, 0):
            o = (slot & 1)*24576 + s*6144 + m*1024
            L.append(f"ds_read_b64_tr_b16 {vr(f+4+4*m,2)}, v{12 + (slot >> 1)} offset:{o}")
            L.append(f"ds_read_b64_tr_b16 {vr(f+6+4*m,2)}, v{12 + (slot >> 1)} offset:{o+512}")
        return L
    def mm(g, fill):
        f = F[g % 4]
        n = (len(fill) + 2) // 3
        for k, (Dd, A_, B_) in enumerate(((AK, f+8, f), (AV, f, f+12), (AQ, f+4, f))):
            a(f"v_mfma_f32_32x32x16_bf16 {vr(Dd,16)}, {vr(A_,4)}, {vr(B_,4)}, {'0' if g == 0 else vr(Dd,16)}")
            for x in fill[k*n:(k+1)*n]: a(x)
    a("s_waitcnt lgkmcnt(0)")
    stamp(a, 2); stamp(a, 2, 1)
    a("s_barrier")
    stamp(a, 3)
    for x in rd(0) + rd(1) + rd(2): a(x)
    epi = f"""v_lshlrev_b32 v1, 4, v0
    v_and_b32 v2, 0x33, v0
    v_bfe_u32 v3, v0, 2, 1
    v_lshl_add_u32 v2, v3, 3, v2
    v_bfe_u32 v3, v0, 3, 1
    v_lshl_add_u32 v2, v3, 2, v2
    v_lshlrev_b32 v2, 4, v2
    v_and_b32 v3, 0x2f, v0
    v_lshlrev_b32 v3, 4, v3
    v_bfe_u32 v4, v0, 4, 1
    v_lshl_add_u32 v3, v4, 17, v3
    s_lshl_b32 s26, s61, 1
    s_add_u32 s26, s26, s33
    s_lshl_b32 s27, s62, 1
    s_add_u32 s27, s27, s34
    s_lshl_b32 s65, s26, 8
    s_lshl_b32 s39, s27, 2
    s_add_u32 s65, s65, s39
    s_add_u32 s65, s65, {FKV}
    s_lshl_b32 s38, s26, 17
    s_lshl_b32 s39, s27, 10
    s_add_u32 s38, s38, s39
    s_add_u32 s39, s38, 65536
    s_lshl_b32 s40, s38, 1
    s_add_u32 s40, s40, {KV}
    s_add_u32 s36, s40, 131072
    s_mov_b32 s37, {f32(0.25*LOG2E)}""".split("\n")
    extra = wsetup() + epi
    issued = 3
    for g in range(32):
        ph = g & 3
        if ph == 2 and g < 30:
            a("s_waitcnt lgkmcnt(0)")
            stamp(a, 3 + (g >> 2), 1)
            a("s_barrier")
        elif ph == 3 and g < 30: pass
        else:
            a(f"s_waitcnt lgkmcnt({min(14, 7*(issued-1-g))})")
        nrd = {0: 1, 1: 0, 2: 2, 3: 1}[ph]
        fill = []
        for k in range(nrd):
            if issued < 32: fill += rd(issued); issued += 1
        room = max(0, 12 - len(fill))
        ex, extra = extra[:room], extra[room:]
        mix = []
        for k in range(max(len(fill), len(ex))):
            if k < len(fill): mix.append(fill[k])
            if k < len(ex): mix.append(ex[k])
        mm(g, mix)
    assert not extra
    stamp(a, 4); stamp(a, 10, 1)
    for r in range(8): a(f"v_cvt_pk_bf16_f32 v{28+r}, v{AK+2*r}, v{AK+2*r+1}")
    a("buffer_store_dwordx4 v[28:31], v2, s[16:19], s40 offen sc1\nbuffer_store_dwordx4 v[32:35], v2, s[16:19], s36 offen sc1")
    for r in range(8): a(f"v_cvt_pk_bf16_f32 v{36+r}, v{AV+2*r}, v{AV+2*r+1}")
    a("buffer_store_dwordx4 v[36:39], v3, s[16:19], s40 offen offset:1024 sc1\nbuffer_store_dwordx4 v[40:43], v3, s[16:19], s40 offen offset:1280 sc1")
    for r in range(16): a(f"v_mul_f32 v{AQ+r}, s37, v{AQ+r}")
    for r in range(8): a(f"v_cvt_pk_bf16_f32 v{44+r}, v{AQ+2*r}, v{AQ+2*r+1}")
    a("buffer_store_dwordx4 v[44:47], v1, s[16:19], s38 offen sc1\nbuffer_store_dwordx4 v[48:51], v1, s[16:19], s39 offen sc1")
    def kvflag():
        a("s_waitcnt vmcnt(0)")
        flag_store(a, 65, 20, 21)
        stamp(a, 5)
    if OPT.get("flagfirst", 0): kvflag()
    a("W_start:")
    a("s_waitcnt lgkmcnt(0)\ns_barrier")
    stamp(a, 6); stamp(a, 11, 1)
    if not OPT.get("flagfirst", 0):
        a("s_cmp_ge_u32 s3, 4\ns_cbranch_scc1 W_nf")
        kvflag()
        a("W_nf:")
    def aload(sig):
        reg = CA + 4*(sig % 10)
        base, off = (VA0, 8*sig) if 8*sig + 3 <= 255 else (VA1, 8*sig - 128)
        return [f"ds_read2_b32 {vr(reg,2)}, v{base} offset0:{off} offset1:{off+1}",
                f"ds_read2_b32 {vr(reg+2,2)}, v{base} offset0:{off+2} offset1:{off+3}"]
    def cloads(it):
        L = ["s_lshl_b32 exec_lo, -1, s44\ns_lshl_b32 exec_hi, -1, s44\n" + "\n".join(f"ds_read_b128 {vr(CB+16*(it&1)+4*s,4)}, v{VB} offset:{it*144+32*s}" for s in range(4)) + "\ns_mov_b64 exec, -1\ns_sub_u32 s44, s44, 1"]
        for s in range(4): L.append("\n".join(aload(4*it + 2 + s)))
        return L
    for x in aload(0) + aload(1) + cloads(0): a(x)
    init = f"""v_mov_b32 v24, 0xdddd
            s_mov_b32 s30, 0x0000ffff
            s_mov_b32 s31, 0x0000ffff
            v_mov_b32 v25, 0x3f803f80
            v_and_b32 v26, 0x1b, v0
            v_cmp_eq_u32 vcc, 16, v26
            v_cndmask_b32 v25, 0, v25, vcc
            s_lshl_b32 s28, s68, 16
            s_lshl_b32 s29, s67, 11
            s_add_u32 s29, s28, s29
            s_add_u32 s29, s29, 32768
            v_add_u32 v20, s29, v1
            s_lshl_b32 s29, s67, 13
            s_add_u32 s29, s28, s29
            s_add_u32 s29, s29, 32768
            v_add_u32 v21, s29, v1
            v_add_u32 v26, s28, v1
            s_lshl_b32 s29, s67, 10
            v_add_u32 v22, s29, v26
            v_xor_b32 v23, 0x10000, v22
            s_lshl_b32 s35, s64, 3
            s_lshl_b32 s29, s67, 1
            s_add_u32 s35, s35, s29
            s_lshl_b32 s48, s63, 16
            s_lshl_b32 s29, s35, 10
            s_add_u32 s48, s48, s29
            s_add_u32 s35, s35, s68
            s_lshl_b32 s28, s68, 11
            s_add_u32 s28, s28, {QL}
            s_add_u32 s33, s45, s28
            s_add_u32 s34, s46, s28""".split("\n")
    init += [f"v_mov_b32 v{r}, v25" for r in range(KB, KB+24)] + [f"v_mov_b32 v{r}, 0" for r in range(O[0], O[0]+64)]
    for it in range(8):
        a("s_waitcnt lgkmcnt(0)")
        fill = cloads(it+1) if it < 7 else []
        if it == OPT.get("pollit", 5):
            a("s_cmp_lt_u32 s3, 4\ns_cbranch_scc1 W_np\nbuffer_load_dword v27, v19, s[16:19], 0 offen sc1\nW_np:")
        for s in range(4):
            sig = 4*it + s
            first = (it == 0 and s == 0)
            for p, sg in ((1, sig), (0, sig+2)):
                a(f"v_mfma_f32_32x32x16_bf16 {vr(CP[p],16)}, {vr(CA+4*(sg%10),4)}, {vr(CB+16*(it&1)+4*s,4)}, {'0' if first else vr(CP[p],16)}")
                if fill: a(fill.pop(0))
                else:
                    for x in init[:5]: a(x)
                    init = init[5:]
    assert not init
    stamp(a, 7)
    for j in range(4):
        for h in range(2):
            a(f"ds_write_b128 v20, {vr(CP[0]+8*j+4*h,4)} offset:{j*8192+h*1024}")
    a("s_cmp_lt_u32 s3, 4\ns_cbranch_scc1 W_done\ns_setprio 0")
    spin(a, 19, 27, preissued=True)
    stamp(a, 8)
    a(f"""
    s_lshl_b32 s29, s67, 10
    s_add_u32 m0, s29, {QL}
    s_add_u32 s49, s48, 1024
    buffer_load_dwordx4 v1, s[16:19], s48 offen sc1 lds
    s_add_u32 m0, s29, {QL + 65536}
    s_mov_b32 s42, s46
    buffer_load_dwordx4 v1, s[16:19], s49 offen sc1 lds
    s_mov_b32 m0, s45
    """)
    for r in range(7):
        a("buffer_load_dwordx4 v1, s[16:19], s42 offen sc1 lds\nbuffer_load_dwordx4 v1, s[16:19], s42 offen offset:2048 sc1 lds")
        if r < 6: a("s_add_u32 s42, s42, 4096\ns_add_u32 m0, m0, 4096")
    a("W_done:")
    a("s_waitcnt vmcnt(10) lgkmcnt(0)\ns_barrier")
    stamp(a, 9)
    a(f"ds_read_b128 {vr(Q[0],4)}, v22 offset:{QL}\nds_read_b128 {vr(Q[1],4)}, v23 offset:{QL}")
    for k in range(8): a(f"ds_read_b128 {vr(CB+4*k,4)}, v21 offset:{k*1024}")
    def kf(i): return KB + 12*(i % 2)
    def loads(t):
        return [f"ds_read_b128 {vr(kf(t),4)}, v26 offset:{t*2048}", "s_mov_b64 exec, s[30:31]",
                f"ds_read_b128 {vr(kf(t)+4,4)}, v26 offset:{t*2048+1024}", f"ds_read_b128 {vr(kf(t)+8,4)}, v26 offset:{t*2048+1280}", "s_mov_b64 exec, -1"]
    a(f"""
    v_lshlrev_b32 v2, 5, v{VN}
    v_lshl_add_u32 v2, v{VH}, 4, v2     ; n*32 + hi*16
    v_mov_b32 v3, v{VH}
    s_add_u32 s28, s69, s68
    s_lshl_b32 s28, s28, 12
    s_lshl_b32 s29, s67, 10
    s_add_u32 s28, s28, s29
    s_add_u32 s28, s28, {BT}
    s_waitcnt lgkmcnt(0)
    """)
    for r in range(8): a(f"v_add_f32 v{CB+r}, v{CB+r}, v{CB+8+r}\nv_add_f32 v{CB+16+r}, v{CB+16+r}, v{CB+24+r}")
    for r in range(8): a(f"v_add_f32 v{CB+r}, v{CB+r}, v{CB+16+r}")
    for r in range(4): a(f"v_cvt_pk_bf16_f32 v{CB+8+r}, v{CB+2*r}, v{CB+2*r+1}")
    a(f"buffer_store_dwordx4 {vr(CB+8,4)}, v2, s[16:19], s28 offen sc1")
    srd(a, 12, 56, 524288)
    a(f"""
    v_lshrrev_b32 v16, 3, v0
    v_lshlrev_b32 v16, 10, v16
    v_and_b32 v17, 7, v0
    v_lshl_add_u32 v16, v17, 4, v16
    v_add_u32 v17, 7168, v16
    v_add_u32 v18, 14336, v16
    v_add_u32 v19, 21504, v16
    s_lshl_b32 s39, s3, 12
    s_add_u32 s39, s39, {SS}
    v_lshlrev_b32 v20, 9, v3
    v_bfe_u32 v21, v0, 2, 2
    v_lshl_add_u32 v20, v21, 7, v20
    v_bfe_u32 v21, v0, 4, 1
    v_lshl_add_u32 v20, v21, 5, v20
    v_and_b32 v21, 3, v0
    v_lshl_add_u32 v20, v21, 3, v20
    v_add_u32 v20, s39, v20
    s_mov_b32 s70, 0
    B_restart:
    s_lshl_b32 s40, s67, 17
    s_lshl_b32 s28, s64, 7
    s_add_u32 s40, s40, s28
    """)
    for x in loads(0): a(x)
    a("s_waitcnt lgkmcnt(0)")
    a(f"v_mfma_f32_32x32x16_bf16 {vr(S[0],16)}, {vr(kf(0),4)}, {vr(Q[0],4)}, {vr(NM[0],16)}")
    a(".p2align 3")
    slots = [(t, q) for t in range(32) for q in range(2)]
    p1, p2, p3 = 2, 5, 10
    def hook(t):
        if t == 3:
            a("s_waitcnt vmcnt(0)\ns_barrier")
            a("s_cmp_lg_u32 s70, 0\ns_cbranch_scc1 B_nob2\ns_mov_b32 m0, s33")
            for r in range(9):
                a("buffer_load_dwordx4 v1, s[16:19], s34 offen sc1 lds")
                if r < 8: a("s_add_u32 s34, s34, 4096\ns_add_u32 m0, m0, 4096")
            a(f"s_cmp_lg_u32 s3, 0\ns_cbranch_scc1 B_nob2\ns_lshl_b32 s28, s63, 5\ns_lshl_b32 s29, s64, 2\ns_add_u32 s28, s28, s29\ns_add_u32 s28, s28, {FBT}")
            flag_store(a, 28, 22, 23)
            a("B_nob2:")
        if t == 13:
            a("s_waitcnt vmcnt(0)\ns_barrier")
        if t in (8, 14, 18, 22):
            a("s_mov_b32 m0, s39")
            for j in range(4): a(f"buffer_load_dwordx4 v{16+j}, s[12:15], s40 offen offset:{j*1024} lds")
            a("s_add_u32 s40, s40, 32768")
        if t in (11, 17, 21, 25):
            r = (11, 17, 21, 25).index(t)
            a("s_waitcnt vmcnt(0)")
            for hd in range(2):
                for wc in range(2):
                    reg = WO + ((2*r+hd)*2 + wc)*4
                    a(f"ds_read_b64_tr_b16 {vr(reg,2)}, v20 offset:{hd*2048+wc*64}\nds_read_b64_tr_b16 {vr(reg+2,2)}, v20 offset:{hd*2048+1024+wc*64}")
    for n, (t, q) in enumerate(slots):
        cur, nxt = S[n & 1], S[(n+1) & 1]
        e = [f"v_exp_f32 v{cur+k}, v{cur+k}" for k in range(16)]
        for x in e[0:p1]: a(x)
        if n > 0:
            tp, qp = slots[n-1]
            a(f"v_smfmac_f32_32x32x32_bf16 {vr(O[qp],16)}, {vr(kf(tp)+8,4)}, {vr(nxt+8,8)}, v24")
        if q == 0:
            hook(t)
            if t < 31:
                for x in loads(t+1): a(x)
        for x in e[p1:p2]: a(x)
        if n + 1 < len(slots):
            tn, qn = slots[n+1]
            if qn == 0: a("s_waitcnt lgkmcnt(0)")
            a(f"v_mfma_f32_32x32x16_bf16 {vr(nxt,16)}, {vr(kf(tn),4)}, {vr(Q[qn],4)}, {vr(NM[qn],16)}")
        for x in e[p2:p3]: a(x)
        a(f"v_smfmac_f32_32x32x32_bf16 {vr(O[q],16)}, {vr(kf(t)+4,4)}, {vr(cur,8)}, v24")
        for x in e[p3:16]: a(x)
    a(f"v_smfmac_f32_32x32x32_bf16 {vr(O[1],16)}, {vr(kf(31)+8,4)}, {vr(S[1]+8,8)}, v24")
    stamp(a, 10)
    a(f"""
    v_add_u32 v27, s39, v1
    v_xor_b32 v28, 16384, v27
    v_mov_b32 v29, 0
    s_mov_b32 s28, {f32(2.0**60)}
    s_mov_b32 s29, {f32(2.0**-30)}
    """)
    for r in range(8): a(f"v_fma_f32 v29, v{O[0]+r}, 0, v29")
    a(f"v_cmp_nge_f32 s[42:43], s28, v{O[0]+8}\nv_cmp_nle_f32 s[44:45], s29, v{O[0]+8}")
    for k in range(3): a(f"ds_write_b128 v27, {vr(O[1]+4*k,4)} offset:{k*1024}")
    for r in range(8): a(f"v_fma_f32 v29, v{O[1]+r}, 0, v29")
    a(f"""
    v_cmp_nge_f32 s[46:47], s28, v{O[1]+8}
    v_cmp_nle_f32 s[48:49], s29, v{O[1]+8}
    v_cmp_u_f32 vcc, v29, v29
    s_or_b64 s[42:43], s[42:43], s[44:45]
    s_or_b64 s[46:47], s[46:47], s[48:49]
    s_or_b64 vcc, vcc, s[42:43]
    s_or_b64 vcc, vcc, s[46:47]
    s_cselect_b32 s28, 1, 0
    v_mov_b32 v29, s28
    ds_write_b32 v27, v29 offset:3072
    v_and_b32 v30, 7, v0
    v_lshlrev_b32 v30, 12, v30
    v_add_u32 v30, {SS}, v30
    s_waitcnt lgkmcnt(0)
    s_barrier
    ds_read_b32 v29, v30 offset:3072
    """)
    for k in range(3): a(f"ds_read_b128 {vr(S[0]+4*k,4)}, v28 offset:{k*1024}")
    a(f"""
    s_lshl_b32 s28, s35, 15
    s_lshl_b32 s29, s63, 10
    s_add_u32 s28, s28, s29
    s_add_u32 s28, s28, {OF}
    s_lshl_b32 s41, s35, 7
    s_lshl_b32 s29, s63, 2
    s_add_u32 s41, s41, s29
    s_add_u32 s41, s41, {FO}
    s_waitcnt lgkmcnt(0)
    v_cmp_ne_u32 vcc, 0, v29
    v_add_f32 v{O[0]+8}, v{O[0]+8}, v{S[0]+8}
    v_rcp_f32 v31, v{O[0]+8}
    s_cmp_lg_u32 s70, 0
    s_cselect_b64 vcc, 0, vcc
    s_cbranch_vccnz B_fallback
    """)
    for r in range(8): a(f"v_add_f32 v{O[0]+r}, v{O[0]+r}, v{S[0]+r}")
    for r in range(8): a(f"v_mul_f32 v{O[0]+r}, v{O[0]+r}, v31")
    for r in range(4): a(f"v_cvt_pk_bf16_f32 v{S[1]+r}, v{O[0]+2*r}, v{O[0]+2*r+1}")
    a(f"buffer_store_dwordx4 {vr(S[1],4)}, v1, s[16:19], s28 offen sc1")
    OFr, ACC, E, RD, ID, BFr = 128, [32, 48], 64, 80, 112, 120
    a(f"""
    s_lshl_b32 s42, s63, 1
    s_add_u32 s42, s42, s68          ; ttile
    v_and_b32 v2, 31, v0
    v_lshrrev_b32 v3, 5, v0
    s_lshl_b32 s28, s63, 5
    s_add_u32 s28, s28, {FBT}
    v_and_b32 v5, 7, v0
    v_lshl_add_u32 v4, v5, 2, s28
    s_lshl_b32 s28, s64, 7
    s_lshl_b32 s29, s67, 5
    s_add_u32 s28, s28, s29
    s_add_u32 s28, s28, {FBT}
    v_and_b32 v5, 7, v0
    v_lshlrev_b32 v5, 2, v5
    v_add_u32 v6, s28, v5
    v_cmp_gt_u32 vcc, 32, v0
    v_cndmask_b32 v4, v6, v4, vcc
    s_lshl_b32 s28, s42, 7
    s_add_u32 s28, s28, s29
    s_add_u32 s28, s28, {FO}
    v_add_u32 v5, s28, v5
    s_waitcnt vmcnt(0)
    """)
    flag_store(a, 41, 6, 7)
    stamp(a, 11)
    spin(a, 4, 6)
    a(f"""
    v_lshlrev_b32 v6, 2, v2
    s_lshl_b32 s28, s42, 7
    s_add_u32 s28, s28, {GG}
    buffer_load_dword v7, v6, s[16:19], s28 offen sc1
    v_and_b32 v6, 15, v0
    v_lshlrev_b32 v6, 12, v6
    v_lshl_add_u32 v6, v3, 4, v6
    s_lshl_b32 s28, s64, 18
    s_lshl_b32 s29, s67, 16
    s_add_u32 s28, s28, s29
    s_lshl_b32 s29, s63, 5
    s_add_u32 s28, s28, s29
    s_lshl_b32 s29, s68, 11
    s_add_u32 s28, s28, s29
    s_add_u32 s28, s28, {BT}
    buffer_load_dwordx4 {vr(BFr,4)}, v6, s[16:19], s28 offen sc1
    buffer_load_dwordx4 {vr(BFr+4,4)}, v6, s[16:19], s28 offen offset:1024 sc1
    buffer_load_dword v8, v5, s[16:19], 0 offen sc1
    v_lshrrev_b32 v9, 3, v2
    v_bfe_u32 v10, v2, 1, 1
    v_lshl_add_u32 v9, v9, 1, v10
    v_bfe_u32 v10, v2, 2, 1
    v_xor_b32 v10, v10, v3
    v_lshl_add_u32 v9, v10, 4, v9
    v_and_b32 v10, 1, v2
    v_lshlrev_b32 v10, 4, v10
    v_mov_b32 v11, 0x3f80
    v_lshlrev_b32 v11, v10, v11
    """)
    for k in range(8): a(f"v_cmp_eq_u32 vcc, {k}, v9\nv_cndmask_b32 v{ID+k}, 0, v11, vcc")
    a(f"""
    s_lshl_b32 s43, s42, 15
    s_lshl_b32 s29, s67, 13
    s_add_u32 s43, s43, s29
    s_add_u32 s43, s43, {OF}
    s_add_u32 s44, s43, 4096
    s_lshl_b32 s28, s68, 16
    s_lshl_b32 s29, s67, 11
    s_add_u32 s28, s28, s29
    v_add_u32 v17, s28, v1
    s_lshl_b32 s28, s68, 16
    s_lshl_b32 s29, s67, 13
    s_add_u32 s28, s28, s29
    v_add_u32 v18, s28, v1
    """)
    srd(a, 20, 54, 2097152)
    spin(a, 5, 8, preissued=True)
    stamp(a, 12)
    for i in range(8):
        a(f"buffer_load_dwordx4 {vr(OFr+4*i,4)}, v1, s[16:19], s{43 + i//4} offen offset:{(i%4)*1024} sc1")
    a(f"v_mfma_f32_32x32x16_bf16 {vr(E,16)}, {vr(BFr,4)}, {vr(ID,4)}, 0")
    a(f"v_mfma_f32_32x32x16_bf16 {vr(E,16)}, {vr(BFr+4,4)}, {vr(ID+4,4)}, {vr(E,16)}")
    a(f"""
    v_sub_f32 v8, 1.0, v7
    v_cvt_pk_bf16_f32 v8, v8, v8
    v_lshlrev_b32 v8, 16, v8
    v_lshlrev_b32 v9, 10, v2
    v_lshl_add_u32 v9, v3, 4, v9
    s_lshl_b32 s28, s42, 15
    s_lshl_b32 s29, s64, 7
    s_add_u32 s28, s28, s29
    s_lshl_b32 s29, s67, 5
    s_add_u32 s28, s28, s29
    """)
    for r in range(8): a(f"v_mul_f32 v{E+r}, v{E+r}, v8")
    for i in range(8):
        a(f"s_waitcnt vmcnt({7-i})")
        for wc in range(2):
            a(f"v_mfma_f32_32x32x16_bf16 {vr(ACC[wc],16)}, {vr(WO+(2*i+wc)*4,4)}, {vr(OFr+4*i,4)}, {'0' if i == 0 else vr(ACC[wc],16)}")
    for j in range(4):
        for h in range(2):
            a(f"ds_write_b128 v17, {vr(ACC[0]+8*j+4*h,4)} offset:{j*8192+h*1024}")
    a("s_waitcnt lgkmcnt(0)\ns_barrier")
    for k in range(8): a(f"ds_read_b128 {vr(RD+4*k,4)}, v18 offset:{k*1024}")
    a("s_waitcnt lgkmcnt(4)")
    for r in range(8): a(f"v_add_f32 v{RD+r}, v{RD+r}, v{RD+8+r}")
    a("s_waitcnt lgkmcnt(0)")
    for r in range(8): a(f"v_add_f32 v{RD+16+r}, v{RD+16+r}, v{RD+24+r}")
    for r in range(8): a(f"v_add_f32 v{RD+r}, v{RD+r}, v{RD+16+r}")
    for r in range(8): a(f"v_fma_f32 v{RD+r}, v{RD+r}, v7, v{E+r}")
    for r in range(4): a(f"v_cvt_pk_bf16_f32 v{12+r}, v{RD+2*r}, v{RD+2*r+1}")
    a(f"""
    v_permlane32_swap_b32 v12, v14
    v_permlane32_swap_b32 v13, v15
    buffer_store_dwordx4 v[12:15], v9, s[20:23], s28 offen
    s_or_b32 s28, s2, s3
    s_cmp_lg_u32 s28, 0
    s_cbranch_scc1 L_fin
    s_mov_b32 s28, {FL}
    """)
    flag_store(a, 28, 6, 7)
    a("L_fin:")
    if STAMP: a("s_waitcnt vmcnt(0)")
    stamp_flush(a)
    a("L_end:\ns_endpgm")
    a(f"""
    B_fallback:
    s_barrier
    s_mov_b32 s70, 1
    s_mov_b32 s28, 64
    v_mov_b32 v27, v1
    v_mov_b32 v28, 0xff800000
    v_mov_b32 v29, 0xff800000
    B_maxloop:
    ds_read_b128 {vr(KB,4)}, v27
    v_add_u32 v27, 2048, v27
    s_waitcnt lgkmcnt(0)
    v_mfma_f32_32x32x16_bf16 {vr(S[0],16)}, {vr(KB,4)}, {vr(Q[0],4)}, 0
    v_mfma_f32_32x32x16_bf16 {vr(S[1],16)}, {vr(KB,4)}, {vr(Q[1],4)}, 0
    s_sub_u32 s28, s28, 1
    s_cmp_lg_u32 s28, 0
    """)
    for q in range(2):
        for k in range(8): a(f"v_max3_f32 v{28+q}, v{28+q}, v{S[q]+2*k}, v{S[q]+2*k+1}")
    a("s_cbranch_scc1 B_maxloop")
    for q in range(2):
        a(f"v_mov_b32 v30, v{28+q}\nv_permlane32_swap_b32 v{28+q}, v30\nv_max_f32 v30, v{28+q}, v30\nv_sub_f32 v30, 0, v30")
        for r in range(16): a(f"v_mov_b32 v{NM[q]+r}, v30")
    for r in range(O[0], O[0]+32): a(f"v_mov_b32 v{r}, 0")
    a("s_branch B_restart\nL_codeend:")

def main(out):
    a = Asm()
    build(a)
    for b in a.check_branches(): print("BRANCH HAZARD:", b)
    K = NAME + "_kernel"
    head = f"; generated by work/gen/gen3.py\n; @launch grid=(256,1,1) block=(512,1,1) lds=163840\n" + '.amdgcn_target "amdgcn-amd-amdhsa--gfx950"\n.text\n'
    tail = f'''.section .rodata,"a"
.p2align 6
.amdhsa_kernel {K}
  .amdhsa_next_free_vgpr 256
  .amdhsa_next_free_sgpr {102 if STAMP else 72}
  .amdhsa_accum_offset 256
  .amdhsa_group_segment_fixed_size 0
  .amdhsa_kernarg_size 128
  .amdhsa_user_sgpr_count 2
  .amdhsa_user_sgpr_kernarg_segment_ptr 1
  .amdhsa_system_sgpr_workgroup_id_x 1
.end_amdhsa_kernel
'''
    open(out, "w").write(head + a.text() + tail)

if __name__ == "__main__":
    if "--stamp" in sys.argv:
        STAMP = True; sys.argv.remove("--stamp")
    for x in list(sys.argv):
        if x.startswith("-D"):
            k, _, v = x[2:].partition("="); OPT[k] = int(v) if v else 1; sys.argv.remove(x)
    main(sys.argv[1] if len(sys.argv) > 1 else f"cdna_kernels/{NAME}.s")
```

```python
import sys, struct, math
from asmlib import Asm

NAME = "gated_mix__softmax_full_mha__ssm_conv_s4__prompt"
def f32(x): return "0x%08x" % struct.unpack("<I", struct.pack("<f", x))[0]
LOG2E = 1.4426950408889634
QF, KV, OF, BT, UT, GG = 0x000000, 0x200000, 0x600000, 0x800000, 0xC00000, 0xF00000
FL = 0xF10000
FUT, FKV, FBT, FO = FL + 0x1000, FL + 0x2000, FL + 0x3000, FL + 0x4000
ST = 0xF80000
WS_BYTES = 0x1000000
STAMP = False
OPT = {}
SPIN = 200000

def vr(b, n): return f"v[{b}:{b+n-1}]"
def srd(a, d, base, nbytes):
    a(f"s_mov_b32 s{d}, s{base}\ns_mov_b32 s{d+1}, s{base+1}\ns_mov_b32 s{d+2}, {hex(nbytes)}\ns_mov_b32 s{d+3}, 0x00020000")
NST = 14
def stamp(a, k, mode=None):
    if mode != OPT.get("st") and k not in (0, NST-1): return
    if STAMP: a(f"{'s_memtime' if OPT.get('cyc') else 's_memrealtime'} s[{72+2*k}:{73+2*k}]")
def stamp_flush(a):
    if not STAMP: return
    stamp(a, NST-1)
    a(f"s_lshl_b32 s4, s2, 9\ns_lshl_b32 s5, s3, 6\ns_add_u32 s4, s4, s5\ns_add_u32 s4, s4, {ST}\ns_waitcnt lgkmcnt(0)\ns_mov_b64 exec, 1\nv_mov_b32 v0, 0")
    for k in range(NST):
        a(f"v_mov_b32 v1, s{72+2*k}\nbuffer_store_dword v1, v0, s[16:19], s4 offen offset:{4*k}")
    if OPT.get("dbg") is not None:
        a(f"s_cmp_lg_u32 s2, {OPT['dbg']}\ns_cbranch_scc1 L_end\ns_cmp_lg_u32 s3, {OPT.get('dbgw', 4)}\ns_cbranch_scc1 L_end\ns_load_dwordx2 s[4:5], s[0:1], 112\ns_waitcnt lgkmcnt(0)")
        for k in range(NST):
            a(f"s_sub_u32 s6, s{72+2*k}, s72\nv_mov_b32 v1, s6\nglobal_store_dword v0, v1, s[4:5] offset:{4*k}")

class VM:
    def __init__(self, a): self.a = a; self.n = 0
    def op(self, text):
        self.a(text); self.n += 1; return self.n
    def wait(self, mark, extra=""):
        left = self.n - mark
        assert 0 <= left <= 63, left
        self.a(f"s_waitcnt vmcnt({left}){extra}")

def cmuls(a, jobs):
    for (d, x, y) in jobs:
        a(f"v_pk_mul_f32 {vr(d,2)}, {vr(x,2)}, {vr(y,2)} op_sel:[0,0] op_sel_hi:[0,1]")
    for (d, x, y) in jobs:
        a(f"v_pk_fma_f32 {vr(d,2)}, {vr(x,2)}, {vr(y,2)}, {vr(d,2)} op_sel:[1,1,0] op_sel_hi:[1,0,1] neg_lo:[1,0,0]")

_lab = [0]
def spin(a, vaddr, vtmp, preissued=False):
    _lab[0] += 1; L = f"SP{_lab[0]}"
    a(f"s_mov_b32 s71, {SPIN}")
    if preissued: a(f"s_branch {L}_chk")
    a(f"""
    {L}:
    buffer_load_dword v{vtmp}, v{vaddr}, s[16:19], 0 offen sc1
    {L}_chk:
    s_waitcnt vmcnt(0)
    v_cmp_ne_u32 vcc, s60, v{vtmp}
    s_sub_u32 s71, s71, 1
    s_cselect_b64 vcc, 0, vcc
    s_cbranch_vccnz {L}
    """)

def flag_store(a, soff_sreg, vtmp0, vtmp1):
    a(f"""
    v_mov_b32 v{vtmp0}, 0
    v_mov_b32 v{vtmp1}, s60
    s_mov_b64 exec, 1
    buffer_store_dword v{vtmp1}, v{vtmp0}, s[16:19], s{soff_sreg} offen sc1
    s_mov_b64 exec, -1
    """)

XRING, WRING = 0, 32768
SS = 131072
KGS = SS
UL, RL = SS, SS + 10240
QL = 28672
CA, CB, CP = 152, 192, [224, 240]
Q = [4, 8]; S = [32, 48]; O = [64, 80]; NM = [96, 112]; KB = 128; WO = 160
VN, VH, VA0, VA1, VB = 14, 15, 16, 17, 18
def wsetup():
    t = f"""
    v_and_b32 v{VN}, 31, v0
    v_lshrrev_b32 v{VH}, 5, v0
    s_mul_i32 s42, s68, 8576
    s_lshl_b32 s43, s67, 10
    s_add_u32 s42, s42, s43
    s_add_u32 s42, s42, {RL}
    v_lshlrev_b32 v{VA0}, 3, v{VH}
    v_sub_u32 v{VA0}, v{VA0}, v{VN}
    v_add_u32 v{VA0}, 31, v{VA0}
    v_and_b32 v{VA1}, 1, v{VA0}
    v_lshrrev_b32 v{VA0}, 1, v{VA0}
    v_lshlrev_b32 v{VA0}, 2, v{VA0}
    v_mul_u32_u24 v{VA1}, 4288, v{VA1}
    v_add3_u32 v{VA0}, v{VA0}, v{VA1}, s42
    v_add_u32 v{VA1}, 512, v{VA0}
    s_mul_i32 s42, s68, 5120
    s_mul_i32 s43, s67, {8*144}
    s_add_u32 s42, s42, s43
    s_add_u32 s42, s42, {UL - 31*144}
    v_mul_u32_u24 v{VB}, 144, v{VN}
    v_lshl_add_u32 v{VB}, v{VH}, 4, v{VB}
    v_add_u32 v{VB}, s42, v{VB}
    s_lshl_b32 s44, s67, 3
    s_sub_u32 s44, 31, s44
    s_bfe_u32 s45, s3, 0x10001
    s_lshl_b32 s45, s45, 16
    s_and_b32 s42, s3, 1
    s_lshl_b32 s42, s42, 10
    s_add_u32 s45, s45, s42
    s_lshl_b32 s46, s63, 17
    s_add_u32 s46, s46, s45
    s_add_u32 s46, s46, {KV}"""
    L = [x.strip() for x in t.strip().split("\n")]
    L += [f"v_mov_b32 v{r}, 0" for r in range(CB, CB+32)]
    return L

def rexp_read(a):
    a(f"""
    s_lshr_b32 s42, s67, 1
    s_lshl_b32 s42, s42, 14
    s_add_u32 s42, s42, {KGS}
    v_lshl_add_u32 v1, v0, 4, s42
    """)
    for q in range(8): a(f"ds_read_b128 {vr(224+4*q,4)}, v1 offset:{(q>>2)*8192 + (q&3)*1024}")
    a("s_waitcnt lgkmcnt(0)")
def rexp_addr(a):
    a(f"""
    v_and_b32 v1, 31, v0
    v_lshlrev_b32 v1, 4, v1
    v_lshrrev_b32 v2, 5, v0
    s_lshr_b32 s42, s67, 1
    s_mul_i32 s42, s42, 8576
    s_and_b32 s43, s67, 1
    s_mul_i32 s43, s43, 4284
    s_add_u32 s42, s42, s43
    s_add_u32 s42, s42, {RL}
    v_lshl_add_u32 v60, v2, 3, v1
    v_sub_u32 v60, {2*2044-512}, v60
    v_lshl_add_u32 v61, v2, 9, v1
    v_sub_u32 v61, {2*1528}, v61
    v_lshl_add_u32 v62, v2, 10, v1
    v_sub_u32 v62, {2*760}, v62
    v_add_u32 v60, s42, v60
    v_add_u32 v61, s42, v61
    v_add_u32 v62, s42, v62
    v_lshl_add_u32 v63, v0, 2, s42
    """)
def rexp_calc(a, L):
    D = 224
    r = lambda k: f"v{D+k}"
    a(f"""
    v_and_b32 v1, 1, v0
    v_cmp_eq_u32 vcc, 0, v1
    v_cmp_eq_u32 s[48:49], 0, v0
    """)
    for k in range(15): a(f"v_add_f32 v{D+k}, v{D+k}, v{D+16+k}")
    a(f"""
    v_cndmask_b32 v1, {r(11)}, {r(10)}, vcc
    v_cndmask_b32 v2, {r(13)}, {r(12)}, vcc
    s_cmp_lg_u32 s34, 0
    s_cbranch_scc1 {L}_c1
    v_mov_b32 v80, 0
    v_cvt_pk_bf16_f32 v64, {r(3)}, {r(2)}
    v_cvt_pk_bf16_f32 v65, {r(1)}, {r(0)}
    v_cvt_pk_bf16_f32 v66, {r(6)}, {r(5)}
    v_cvt_pk_bf16_f32 v67, {r(4)}, {r(4)}
    v_cvt_pk_bf16_f32 v68, {r(9)}, {r(9)}
    v_cvt_pk_bf16_f32 v69, {r(8)}, {r(8)}
    v_cvt_pk_bf16_f32 v70, {r(8)}, {r(7)}
    v_cvt_pk_bf16_f32 v71, {r(7)}, {r(7)}
    v_cvt_pk_bf16_f32 v72, {r(11)}, {r(11)}
    v_cvt_pk_bf16_f32 v73, {r(11)}, v1
    v_cvt_pk_bf16_f32 v74, {r(10)}, {r(10)}
    v_mov_b32 v75, v74
    v_cvt_pk_bf16_f32 v76, {r(13)}, {r(13)}
    v_cvt_pk_bf16_f32 v77, {r(13)}, v2
    v_cvt_pk_bf16_f32 v78, {r(12)}, {r(12)}
    v_mov_b32 v79, v78
    s_branch {L}_e
    {L}_c1:
    v_cvt_pk_bf16_f32 v80, {r(0)}, 0
    v_cndmask_b32 v80, 0, v80, s[48:49]
    v_cvt_pk_bf16_f32 v64, {r(14)}, {r(3)}
    v_cvt_pk_bf16_f32 v65, {r(2)}, {r(1)}
    v_cvt_pk_bf16_f32 v66, {r(6)}, {r(6)}
    v_cvt_pk_bf16_f32 v67, {r(5)}, {r(4)}
    v_cvt_pk_bf16_f32 v68, {r(9)}, {r(9)}
    v_cvt_pk_bf16_f32 v69, {r(9)}, {r(8)}
    v_cvt_pk_bf16_f32 v70, {r(8)}, {r(8)}
    v_cvt_pk_bf16_f32 v71, {r(7)}, {r(7)}
    v_cvt_pk_bf16_f32 v72, {r(11)}, {r(11)}
    v_mov_b32 v73, v72
    v_cvt_pk_bf16_f32 v74, v1, {r(10)}
    v_cvt_pk_bf16_f32 v75, {r(10)}, {r(10)}
    v_cvt_pk_bf16_f32 v76, {r(13)}, {r(13)}
    v_mov_b32 v77, v76
    v_cvt_pk_bf16_f32 v78, v2, {r(12)}
    v_cvt_pk_bf16_f32 v79, {r(12)}, {r(12)}
    {L}_e:
    """)
def rexp_write(a):
    a(f"""
    s_cmp_lg_u32 s34, 0
    s_cbranch_scc1 RW_c1
    ds_write_b64 v60, v[64:65] offset:512
    ds_write_b64 v60, v[66:67]
    ds_write_b128 v61, v[68:71]
    ds_write_b128 v62, v[72:75] offset:512
    ds_write_b128 v62, v[76:79]
    s_branch RW_e
    RW_c1:
    ds_write2_b32 v60, v64, v65 offset0:128 offset1:129
    ds_write2_b32 v60, v66, v67 offset0:0 offset1:1
    ds_write2_b32 v61, v68, v69 offset0:0 offset1:1
    ds_write2_b32 v61, v70, v71 offset0:2 offset1:3
    ds_write2_b32 v62, v72, v73 offset0:128 offset1:129
    ds_write2_b32 v62, v74, v75 offset0:130 offset1:131
    ds_write2_b32 v62, v76, v77 offset0:0 offset1:1
    ds_write2_b32 v62, v78, v79 offset0:2 offset1:3
    RW_e:
    s_mov_b32 exec_hi, 0
    ds_write_b32 v63, v80 offset:4096
    s_mov_b64 exec, -1
    """)

def build(a):
    K = NAME + "_kernel"
    a(f".globl {K}\n.p2align 8\n.type {K},@function\n{K}:")
    a("s_cmp_ge_u32 s2, 256\ns_cbranch_scc1 L_end")
    stamp(a, 0)
    a(f"""
    s_load_dwordx4 s[4:7], s[0:1], 0
    s_load_dwordx8 s[36:43], s[0:1], 32
    s_load_dwordx8 s[44:51], s[0:1], 64
    s_load_dwordx2 s[58:59], s[0:1], 120
    s_load_dwordx4 s[52:55], s[0:1], 96
    s_load_dwordx2 s[56:57], s[0:1], 16
    s_getpc_b64 s[24:25]
    A_pc:
    v_lshlrev_b32 v1, 7, v0
    v_min_u32 v1, L_codeend-A_pc-4, v1
    global_load_dword v255, v1, s[24:25]
    v_lshrrev_b32 v1, 6, v0
    v_and_b32 v0, 63, v0
    v_readfirstlane_b32 s3, v1
    s_and_b32 s22, s2, 7             ; xcd
    s_lshr_b32 s23, s2, 3            ; i
    s_and_b32 s25, s23, 3
    s_lshr_b32 s64, s23, 2
    s_and_b32 s61, s22, 1
    s_lshl_b32 s61, s61, 2
    s_add_u32 s61, s61, s25          ; hq
    s_lshr_b32 s62, s22, 1
    s_lshl_b32 s62, s62, 3
    s_add_u32 s62, s62, s64
    s_lshl_b32 s63, s22, 2
    s_add_u32 s63, s63, s25
    s_and_b32 s67, s3, 3             ; w4
    s_lshr_b32 s68, s3, 2            ; hf
    s_lshl_b32 s69, s63, 4
    s_lshl_b32 s26, s64, 1
    s_add_u32 s69, s69, s26
    s_lshr_b32 s33, s67, 1
    s_and_b32 s34, s67, 1
    s_cmp_ge_u32 s3, 4
    s_cbranch_scc1 A_helper
    s_add_u32 s35, s69, s33          ; channel d
    s_lshl_b32 s28, s35, 8
    s_lshl_b32 s29, s34, 7
    s_add_u32 s28, s28, s29
    v_lshl_add_u32 v1, v0, 1, s28
    s_lshl_b32 s29, s35, 1
    v_mov_b32 v2, s29
    """)
    vmc = VM(a)
    for r in range(20, 28): a(f"v_mov_b32 v{r}, 0")
    a("s_waitcnt lgkmcnt(0)")
    vmc.op("global_load_short_d16_hi v26, v2, s[48:49]")
    for k in range(2): m_p1 = vmc.op(f"global_load_short_d16_hi v{20+k}, v1, s[{36+2*k}:{37+2*k}]")
    for k in range(2, 6): vmc.op(f"global_load_short_d16_hi v{20+k}, v1, s[{36+2*k}:{37+2*k}]")
    m_par = vmc.op("global_load_short_d16_hi v27, v2, s[50:51]")
    a("s_branch A_compute")

    a("A_helper:")
    vm = VM(a)
    a(f"""
    s_lshl_b32 s20, s62, 16
    s_lshl_b32 s21, s61, 7
    s_lshl_b32 s26, s67, 5
    s_add_u32 s26, s26, s21
    s_add_u32 s26, s26, s20
    s_lshl_b32 s27, s67, 11          ; w4*2048
    s_add_u32 m0, s27, {3*8192}
    v_lshrrev_b32 v1, 1, v0
    v_lshlrev_b32 v5, 10, v1
    v_and_b32 v2, 1, v0
    v_lshl_add_u32 v5, v2, 4, v5
    v_add_u32 v6, 31744, v5
    s_lshl_b32 s35, s25, 1
    s_add_u32 s35, s35, s62
    s_lshr_b32 s24, s61, 2
    s_add_u32 s35, s35, s24
    s_and_b32 s35, s35, 7
    s_lshl_b32 s24, s67, 14
    s_add_u32 s20, s20, s24
    s_mul_i32 s24, s67, 49152
    s_add_u32 s21, s21, s24
    s_mul_i32 s32, s67, 6144
    v_lshrrev_b32 v1, 3, v0
    v_and_b32 v3, 7, v0
    v_lshrrev_b32 v4, 4, v0
    v_xor_b32 v7, v3, v4
    v_lshlrev_b32 v2, 10, v1
    v_lshl_add_u32 v8, v7, 4, v2
    v_xor_b32 v9, 64, v8
    v_add_u32 v9, 7168, v9
    v_and_b32 v4, 1, v4
    v_lshlrev_b32 v4, 2, v4
    v_xor_b32 v7, v3, v4
    v_mul_u32_u24 v2, 3072, v1
    v_lshl_add_u32 v12, v7, 4, v2
    s_waitcnt lgkmcnt(0)
    """)
    srd(a, 8, 4, 2097152)
    vm.op("buffer_load_dwordx4 v5, s[8:11], s26 offen lds")
    m_ut = vm.op("buffer_load_dwordx4 v6, s[8:11], s26 offen offset:1024 lds")
    srd(a, 12, 6, 1572864)
    def dma(c):
        slot = c & 3
        a(f"s_lshl_b32 s28, s35, 7\ns_add_u32 s28, s28, s20\ns_add_u32 m0, s27, {slot*8192}\ns_mul_i32 s30, s35, 196608")
        for i in range(2): vm.op(f"buffer_load_dwordx4 v{8+i}, s[8:11], s28 offen offset:{i*1024} lds")
        a(f"s_add_u32 s30, s30, s21\ns_add_u32 m0, s32, {WRING + slot*24576}\ns_add_u32 s35, s35, 1")
        for m in range(3): vm.op(f"buffer_load_dwordx4 v12, s[12:15], s30 offen offset:{m*1024} lds")
        a(f"s_add_u32 s30, s30, 24576\ns_add_u32 m0, s32, {WRING + slot*24576 + 3072}\ns_and_b32 s35, s35, 7")
        for m in range(3): mk = vm.op(f"buffer_load_dwordx4 v12, s[12:15], s30 offen offset:{m*1024} lds")
        return mk
    mc = {}
    NPRE = OPT.get("npre", 1)
    for c in range(NPRE): mc[c] = dma(c)
    a(f"s_mov_b32 s24, {FL}\ns_load_dword s60, s[58:59], s24")
    srd(a, 16, 58, WS_BYTES)
    a(f"""
    s_add_u32 s24, s27, {3*8192}
    v_lshrrev_b32 v4, 4, v0          ; g
    v_and_b32 v7, 15, v0             ; i
    v_lshlrev_b32 v5, 8, v4
    v_lshl_add_u32 v5, v7, 3, v5
    v_add_u32 v5, s24, v5
    v_lshlrev_b32 v6, 7, v7
    v_lshl_add_u32 v6, v4, 4, v6
    v_add_u32 v6, s24, v6
    v_lshl_add_u32 v10, v0, 4, s24
    v_lshlrev_b32 v2, 12, v1
    v_lshl_add_u32 v11, v3, 4, v2    ; UT store voff
    s_lshl_b32 s65, s61, 2
    s_add_u32 s65, s65, s67
    s_lshl_b32 s24, s65, 16
    s_lshl_b32 s25, s62, 7
    s_add_u32 s24, s24, s25
    s_add_u32 s24, s24, {UT}
    s_add_u32 s25, s24, 32768
    s_lshl_b32 s65, s65, 7
    s_lshl_b32 s26, s62, 2
    s_add_u32 s65, s65, s26
    s_add_u32 s65, s65, {FUT}
    s_waitcnt lgkmcnt(0)
    s_mul_i32 s60, s60, 0x9E3779B1
    s_add_u32 s60, s60, 0x7F4A7C15
    """)
    vm.wait(m_ut)
    stamp(a, 1); stamp(a, 1, 1)
    for k in range(4): a(f"ds_read_b64_tr_b16 {vr(64+2*k,2)}, v5 offset:{(k>>1)*1024 + (k&1)*128}")
    a("s_waitcnt lgkmcnt(0)\nds_write_b128 v6, v[64:67]\nds_write_b128 v6, v[68:71] offset:64\nds_read_b128 v[72:75], v10\nds_read_b128 v[76:79], v10 offset:1024\ns_waitcnt lgkmcnt(1)")
    vm.op("buffer_store_dwordx4 v[72:75], v11, s[16:19], s24 offen sc1")
    a("s_waitcnt lgkmcnt(0)")
    m_us = vm.op("buffer_store_dwordx4 v[76:79], v11, s[16:19], s25 offen sc1")
    for c in range(NPRE, 3): mc[c] = dma(c)
    vm.wait(m_us)
    flag_store(a, 65, 56, 57); vm.n += 1
    stamp(a, 2)
    mc[3] = dma(3)
    a(f"""
    s_lshl_b32 s31, s63, 6
    s_lshl_b32 s24, s64, 3
    s_add_u32 s31, s31, s24
    s_lshl_b32 s24, s67, 1
    s_add_u32 s31, s31, s24
    s_lshl_b32 s24, s31, 10
    v_lshlrev_b32 v3, 5, v0
    v_and_b32 v4, 0x3ff, v3
    """)
    vm.op("buffer_load_dwordx4 v[28:31], v3, s[8:11], s24 offen")
    vm.op("buffer_load_dwordx4 v[32:35], v3, s[8:11], s24 offen offset:16")
    vm.op("global_load_dwordx4 v[36:39], v4, s[52:53]")
    vm.op("global_load_dwordx4 v[40:43], v4, s[52:53] offset:16")
    for x in wsetup(): a(x)
    a(f"""
    s_lshl_b32 s24, s63, 7
    s_add_u32 s24, s24, {FUT}
    v_lshl_add_u32 v58, v{VN}, 2, s24
    s_lshr_b32 s24, s63, 1
    s_lshl_b32 s24, s24, 8
    s_add_u32 s24, s24, {FKV}
    v_lshl_add_u32 v19, v0, 2, s24
    s_lshl_b32 s24, s34, 7
    """)
    for k in range(3):
        a(f"v_add_u32 v1, s24, v0\nv_add_u32 v1, {64*k}, v1\nv_mul_u32_u24 v2, 7282, v1\nv_lshrrev_b32 v2, 16, v2\nv_sub_u32 v1, v1, v2\nv_lshlrev_b32 v{20+k}, 4, v1")
    rexp_addr(a)
    for c in range(8):
        vm.wait(mc[c])
        stamp(a, 2+c, 1)
        a("s_barrier")
        if c == 0:
            stamp(a, 3)
            rexp_read(a)
        if 1 <= c <= 4: mc[c+3] = dma(c+3)
        if c == 4: vm.op("buffer_load_dword v59, v58, s[16:19], 0 offen sc1")
        if c == 5: rexp_calc(a, "RA")
        if c == 6:
            a("v_mov_b32 v54, 0")
            for k in range(8): a(f"v_dot2c_f32_bf16 v54, v{28+k}, v{36+k}")
    spin(a, 58, 59, preissued=True)
    a(f"""
    s_add_u32 s24, s69, s33
    s_lshl_b32 s29, s24, 12
    s_add_u32 s29, s29, {UT}
    s_mul_i32 s24, s33, 5120
    s_lshl_b32 s25, s34, 11
    s_add_u32 s24, s24, s25
    s_add_u32 m0, s24, {UL}
    """)
    for k in range(3):
        a(f"buffer_load_dwordx4 v{20+k}, s[16:19], s29 offen sc1 lds")
        if k < 2: a("s_add_u32 m0, m0, 1024")
    stamp(a, 4); stamp(a, 10, 1)
    rexp_write(a)
    for sh in (1, 2, 4, 8): a(f"v_add_f32_dpp v54, v54, v54 row_shr:{sh} row_mask:0xf bank_mask:0xf bound_ctrl:0")
    a("v_add_f32_dpp v54, v54, v54 row_bcast:15 row_mask:0xa bank_mask:0xf")
    a(f"""
    v_cvt_pk_bf16_f32 v54, v54, v54
    v_lshlrev_b32 v54, 16, v54
    v_mul_f32 v54, {f32(-LOG2E)}, v54
    v_exp_f32 v54, v54
    v_add_f32 v54, 1.0, v54
    v_rcp_f32 v54, v54
    v_cvt_pk_bf16_f32 v54, v54, v54
    v_lshlrev_b32 v54, 16, v54
    v_lshlrev_b32 v55, 2, v{VH}
    s_lshl_b32 s31, s31, 2
    s_add_u32 s31, s31, {GG}
    v_lshlrev_b32 v1, 4, v0
    s_waitcnt vmcnt(0)
    s_mov_b32 exec_lo, 0x80000000
    s_mov_b32 exec_hi, 0x80000000
    buffer_store_dword v54, v55, s[16:19], s31 offen sc1
    s_mov_b64 exec, -1
    s_setprio 1
    s_branch W_start
    """)

    a("A_compute:")
    vm = vmc
    a(f"s_mov_b32 s24, {FL}\ns_load_dword s60, s[58:59], s24")
    srd(a, 16, 58, WS_BYTES)
    a(f"""
    v_and_b32 v3, 3, v0
    v_lshrrev_b32 v4, 5, v0
    v_bfe_u32 v2, v0, 2, 2
    v_bfe_u32 v5, v0, 4, 1
    v_lshlrev_b32 v1, 5, v5
    v_lshl_add_u32 v6, v3, 3, v1            ; (g&1)*32 + (i&3)*8
    v_lshl_add_u32 v1, v4, 9, v6
    v_lshl_add_u32 v13, v2, 6, v1
    s_lshl_b32 s66, s67, 13
    s_add_u32 s66, s66, {KGS}
    v_bfe_u32 v1, v0, 1, 2
    v_lshlrev_b32 v1, 4, v1
    v_lshl_add_u32 v1, v0, 6, v1
    v_add_u32 v14, s66, v1
    v_xor_b32 v15, 16, v14
    v_xor_b32 v16, 32, v14
    v_xor_b32 v17, 48, v14
    v_bfe_u32 v7, v0, 3, 1
    v_lshlrev_b32 v1, 4, v7
    v_xor_b32 v18, v13, v1
    v_add_u32 v18, s66, v18
    v_xor_b32 v19, 32, v18
    v_add_u32 v19, 256, v19
    v_lshl_add_u32 v3, v0, 4, s66
    v_mul_u32_u24 v1, 3072, v4
    v_lshl_add_u32 v1, v2, 7, v1
    v_xor_b32 v7, s33, v7
    v_lshl_add_u32 v1, v7, 6, v1
    v_add_u32 v1, v1, v6
    v_add_u32 v12, {WRING}, v1
    v_add_u32 v13, {WRING + 49152}, v1
    s_lshl_b32 s29, s34, 12
    v_and_b32 v1, 31, v0
    v_bfe_u32 v2, v0, 1, 3
    v_xor_b32 v2, v2, v4
    v_lshlrev_b32 v1, 7, v1
    v_lshl_add_u32 v1, v2, 4, v1
    v_add_u32 v8, s29, v1
    v_xor_b32 v9, 32, v8
    v_xor_b32 v10, 64, v8
    v_xor_b32 v11, 96, v8
    s_waitcnt lgkmcnt(0)
    s_mul_i32 s60, s60, 0x9E3779B1
    s_add_u32 s60, s60, 0x7F4A7C15
    """)
    vm.wait(m_p1)
    stamp(a, 1); stamp(a, 1, 1)
    a(f"""
    v_mul_f32 v26, {f32(LOG2E)}, v26
    v_exp_f32 v26, v26
    v_cvt_pk_bf16_f32 v26, v26, v26
    v_lshlrev_b32 v26, 16, v26
    v_mul_f32 v20, v26, v20
    v_mul_f32 v21, v26, v21
    v_mul_f32 v20, {f32(LOG2E)}, v20
    v_mul_f32 v21, {f32(1/(2*math.pi))}, v21
    """)
    P = lambda j: 64 + 2*j
    zs = ((P(1), 8.0, 36), (44, 1.0, 38), (48, 256.0, 40))
    for (z, e, t) in zs: a(f"v_mul_f32 v{t}, {f32(e)}, v20\nv_mul_f32 v{t+1}, {f32(e)}, v21")
    for (z, e, t) in zs: a(f"v_exp_f32 v{t}, v{t}\nv_fract_f32 v{t+1}, v{t+1}")
    for (z, e, t) in zs: a(f"v_cos_f32 v{z}, v{t+1}\nv_sin_f32 v{z+1}, v{t+1}")
    for (z, e, t) in zs: a(f"v_pk_mul_f32 {vr(z,2)}, {vr(z,2)}, {vr(t,2)} op_sel:[0,0] op_sel_hi:[1,0]")
    a(f"v_mov_b32 v{P(0)}, 1.0\nv_mov_b32 v{P(0)+1}, 0")
    T = lambda i: 160 + 2*i
    Z2, Z4 = 178, 180
    Z = {256: 48, 512: 182, 768: 184, 1024: 186, 1280: 188, 1536: 190, 1792: 192}
    vm.wait(m_par)
    cmuls(a, [(P(2), P(1), P(1)), (T(0), 22, 24), (Z2, 44, 44), (Z[512], 48, 48)])
    a(f"v_pk_mul_f32 {vr(T(0),2)}, {vr(T(0),2)}, v[26:27] op_sel:[0,0] op_sel_hi:[1,0]")
    cmuls(a, [(P(3), P(1), P(2)), (P(4), P(2), P(2)), (Z4, Z2, Z2), (Z[768], Z[512], 48), (Z[1024], Z[512], Z[512]), (T(1), T(0), 44), (T(8), T(0), P(1)), (T(2), T(0), Z2)])
    cmuls(a, [(P(4+j), P(j), P(4)) for j in (1, 2, 3, 4)] + [(T(3), T(1), Z2), (Z[1280], Z[1024], 48), (Z[1536], Z[1024], Z[512]), (Z[1792], Z[1024], Z[768])])
    cmuls(a, [(P(8+j), P(j), P(8)) for j in range(1, 9)] + [(T(4+i), T(i), Z4) for i in range(4)])
    tmp = [28, 52]
    wn = [0]
    def wr_chunk(c, srcs, neg_im):
        n = "-" if neg_im else ""
        t = tmp[wn[0] & 1]; wn[0] += 1
        for k in range(4): a(f"v_cvt_pk_bf16_f32 v{t+k}, v{srcs[2*k]}, v{srcs[2*k+1]}")
        for k in range(4): a(f"v_cvt_pk_bf16_f32 v{t+4+k}, {n}v{srcs[2*k]+1}, {n}v{srcs[2*k+1]+1}")
        a(f"ds_write_b128 v{14+c}, {vr(t,4)}\nds_write_b128 v{14+c}, {vr(t+4,4)} offset:4096")
    wr_chunk(0, [P(j) for j in range(8)], True)
    wr_chunk(1, [P(j) for j in range(8, 16)], True)
    cmuls(a, [(P(16+j), P(j), P(16)) for j in range(1, 16)])
    wr_chunk(2, [P(j) for j in range(16, 24)], True)
    wr_chunk(3, [P(j) for j in range(24, 32)], True)
    cols = [0,1,2,3,4,5,6,7, 256,258,260,512, 260,262,264,768, 516,520,1024,1032, 772,776,1536,1544, 1280,1288,4,0, 1792,1800,8,0]
    loc = {i: T(i) for i in range(9)}
    jobs = []; nxt = 64
    for al in cols:
        if al not in loc:
            loc[al] = nxt; jobs.append((nxt, T(al % 256), Z[al - al % 256])); nxt += 2
    cmuls(a, jobs[:10])
    BF = 128
    a("s_waitcnt lgkmcnt(0)")
    for s in range(8):
        a(f"ds_read_b64_tr_b16 {vr(BF+4*s,2)}, v18 offset:{s*1024}\nds_read_b64_tr_b16 {vr(BF+4*s+2,2)}, v19 offset:{s*1024}")
    cmuls(a, jobs[10:])
    for c in range(4): wr_chunk(c, [loc[al] for al in cols[8*c:8*c+8]], False)
    AFr, D = 64, 224
    for s in range(8):
        a(f"ds_read_b64_tr_b16 {vr(AFr+4*s,2)}, v18 offset:{s*1024}\nds_read_b64_tr_b16 {vr(AFr+4*s+2,2)}, v19 offset:{s*1024}")
    for s in range(8):
        a(f"s_waitcnt lgkmcnt({14-2*s})")
        a(f"v_mfma_f32_32x32x16_bf16 {vr(D,16)}, {vr(AFr+4*s,4)}, {vr(BF+4*s,4)}, {'0' if s == 0 else vr(D,16)}")
    a(f"s_xor_b32 exec_lo, s34, 1\ns_mov_b32 exec_hi, 0\nv_add_f32 v{D}, v{D}, v27\ns_mov_b64 exec, -1")
    for q in range(4): a(f"ds_write_b128 v3, {vr(D+4*q,4)} offset:{q*1024}")
    F = [28, 44, 112, 128]
    AQ, AK, AV = 64, 80, 96
    def rd(g):
        f = F[g % 4]; slot = (g >> 2) & 3; s = g & 3
        L = [f"ds_read_b128 {vr(f,4)}, v{8+s} offset:{slot*8192}"]
        for m in (1, 2, 0):
            o = (slot & 1)*24576 + s*6144 + m*1024
            L.append(f"ds_read_b64_tr_b16 {vr(f+4+4*m,2)}, v{12 + (slot >> 1)} offset:{o}")
            L.append(f"ds_read_b64_tr_b16 {vr(f+6+4*m,2)}, v{12 + (slot >> 1)} offset:{o+512}")
        return L
    def mm(g, fill):
        f = F[g % 4]
        n = (len(fill) + 2) // 3
        for k, (Dd, A_, B_) in enumerate(((AK, f+8, f), (AV, f, f+12), (AQ, f+4, f))):
            a(f"v_mfma_f32_32x32x16_bf16 {vr(Dd,16)}, {vr(A_,4)}, {vr(B_,4)}, {'0' if g == 0 else vr(Dd,16)}")
            for x in fill[k*n:(k+1)*n]: a(x)
    a("s_waitcnt lgkmcnt(0)")
    stamp(a, 2); stamp(a, 2, 1)
    a("s_barrier")
    stamp(a, 3)
    for x in rd(0) + rd(1) + rd(2): a(x)
    epi = f"""v_lshlrev_b32 v1, 4, v0
    v_and_b32 v2, 0x33, v0
    v_bfe_u32 v3, v0, 2, 1
    v_lshl_add_u32 v2, v3, 3, v2
    v_bfe_u32 v3, v0, 3, 1
    v_lshl_add_u32 v2, v3, 2, v2
    v_lshlrev_b32 v2, 4, v2
    v_and_b32 v3, 0x2f, v0
    v_lshlrev_b32 v3, 4, v3
    v_bfe_u32 v4, v0, 4, 1
    v_lshl_add_u32 v3, v4, 17, v3
    s_lshl_b32 s26, s61, 1
    s_add_u32 s26, s26, s33
    s_lshl_b32 s27, s62, 1
    s_add_u32 s27, s27, s34
    s_lshl_b32 s65, s26, 8
    s_lshl_b32 s39, s27, 2
    s_add_u32 s65, s65, s39
    s_add_u32 s65, s65, {FKV}
    s_lshl_b32 s38, s26, 17
    s_lshl_b32 s39, s27, 10
    s_add_u32 s38, s38, s39
    s_add_u32 s39, s38, 65536
    s_lshl_b32 s40, s38, 1
    s_add_u32 s40, s40, {KV}
    s_add_u32 s36, s40, 131072
    s_mov_b32 s37, {f32(0.25*LOG2E)}""".split("\n")
    extra = wsetup() + epi
    issued = 3
    for g in range(32):
        ph = g & 3
        if ph == 2 and g < 30:
            a("s_waitcnt lgkmcnt(0)")
            stamp(a, 3 + (g >> 2), 1)
            a("s_barrier")
        elif ph == 3 and g < 30: pass
        else:
            a(f"s_waitcnt lgkmcnt({min(14, 7*(issued-1-g))})")
        nrd = {0: 1, 1: 0, 2: 2, 3: 1}[ph]
        fill = []
        for k in range(nrd):
            if issued < 32: fill += rd(issued); issued += 1
        room = max(0, 12 - len(fill))
        ex, extra = extra[:room], extra[room:]
        mix = []
        for k in range(max(len(fill), len(ex))):
            if k < len(fill): mix.append(fill[k])
            if k < len(ex): mix.append(ex[k])
        mm(g, mix)
    assert not extra
    stamp(a, 4); stamp(a, 10, 1)
    for r in range(8): a(f"v_cvt_pk_bf16_f32 v{28+r}, v{AK+2*r}, v{AK+2*r+1}")
    a("buffer_store_dwordx4 v[28:31], v2, s[16:19], s40 offen sc1\nbuffer_store_dwordx4 v[32:35], v2, s[16:19], s36 offen sc1")
    for r in range(8): a(f"v_cvt_pk_bf16_f32 v{36+r}, v{AV+2*r}, v{AV+2*r+1}")
    a("buffer_store_dwordx4 v[36:39], v3, s[16:19], s40 offen offset:1024 sc1\nbuffer_store_dwordx4 v[40:43], v3, s[16:19], s40 offen offset:1280 sc1")
    for r in range(16): a(f"v_mul_f32 v{AQ+r}, s37, v{AQ+r}")
    for r in range(8): a(f"v_cvt_pk_bf16_f32 v{44+r}, v{AQ+2*r}, v{AQ+2*r+1}")
    a("buffer_store_dwordx4 v[44:47], v1, s[16:19], s38 offen sc1\nbuffer_store_dwordx4 v[48:51], v1, s[16:19], s39 offen sc1")
    def kvflag():
        a("s_waitcnt vmcnt(0)")
        flag_store(a, 65, 20, 21)
        stamp(a, 5)
    if OPT.get("flagfirst", 0): kvflag()
    a("W_start:")
    a("s_waitcnt lgkmcnt(0)\ns_barrier")
    stamp(a, 6); stamp(a, 11, 1)
    if not OPT.get("flagfirst", 0):
        a("s_cmp_ge_u32 s3, 4\ns_cbranch_scc1 W_nf")
        kvflag()
        a("W_nf:")
    def aload(sig):
        reg = CA + 4*(sig % 10)
        base, off = (VA0, 8*sig) if 8*sig + 3 <= 255 else (VA1, 8*sig - 128)
        return [f"ds_read2_b32 {vr(reg,2)}, v{base} offset0:{off} offset1:{off+1}",
                f"ds_read2_b32 {vr(reg+2,2)}, v{base} offset0:{off+2} offset1:{off+3}"]
    def cloads(it):
        L = ["s_lshl_b32 exec_lo, -1, s44\ns_lshl_b32 exec_hi, -1, s44\n" + "\n".join(f"ds_read_b128 {vr(CB+16*(it&1)+4*s,4)}, v{VB} offset:{it*144+32*s}" for s in range(4)) + "\ns_mov_b64 exec, -1\ns_sub_u32 s44, s44, 1"]
        for s in range(4): L.append("\n".join(aload(4*it + 2 + s)))
        return L
    for x in aload(0) + aload(1) + cloads(0): a(x)
    init = f"""v_mov_b32 v24, 0xdddd
            s_mov_b32 s30, 0x0000ffff
            s_mov_b32 s31, 0x0000ffff
            v_mov_b32 v25, 0x3f803f80
            v_and_b32 v26, 0x1b, v0
            v_cmp_eq_u32 vcc, 16, v26
            v_cndmask_b32 v25, 0, v25, vcc
            s_lshl_b32 s28, s68, 16
            s_lshl_b32 s29, s67, 11
            s_add_u32 s29, s28, s29
            s_add_u32 s29, s29, 32768
            v_add_u32 v20, s29, v1
            s_lshl_b32 s29, s67, 13
            s_add_u32 s29, s28, s29
            s_add_u32 s29, s29, 32768
            v_add_u32 v21, s29, v1
            v_add_u32 v26, s28, v1
            s_lshl_b32 s29, s67, 10
            v_add_u32 v22, s29, v26
            v_xor_b32 v23, 0x10000, v22
            s_lshl_b32 s35, s64, 3
            s_lshl_b32 s29, s67, 1
            s_add_u32 s35, s35, s29
            s_lshl_b32 s48, s63, 16
            s_lshl_b32 s29, s35, 10
            s_add_u32 s48, s48, s29
            s_add_u32 s35, s35, s68
            s_lshl_b32 s28, s68, 11
            s_add_u32 s28, s28, {QL}
            s_add_u32 s33, s45, s28
            s_add_u32 s34, s46, s28""".split("\n")
    init += [f"v_mov_b32 v{r}, v25" for r in range(KB, KB+24)] + [f"v_mov_b32 v{r}, 0" for r in range(O[0], O[0]+64)]
    for it in range(8):
        a("s_waitcnt lgkmcnt(0)")
        fill = cloads(it+1) if it < 7 else []
        if it == OPT.get("pollit", 5):
            a("s_cmp_lt_u32 s3, 4\ns_cbranch_scc1 W_np\nbuffer_load_dword v27, v19, s[16:19], 0 offen sc1\nW_np:")
        for s in range(4):
            sig = 4*it + s
            first = (it == 0 and s == 0)
            for p, sg in ((1, sig), (0, sig+2)):
                a(f"v_mfma_f32_32x32x16_bf16 {vr(CP[p],16)}, {vr(CA+4*(sg%10),4)}, {vr(CB+16*(it&1)+4*s,4)}, {'0' if first else vr(CP[p],16)}")
                if fill: a(fill.pop(0))
                else:
                    for x in init[:5]: a(x)
                    init = init[5:]
    assert not init
    stamp(a, 7)
    for j in range(4):
        for h in range(2):
            a(f"ds_write_b128 v20, {vr(CP[0]+8*j+4*h,4)} offset:{j*8192+h*1024}")
    a("s_cmp_lt_u32 s3, 4\ns_cbranch_scc1 W_done\ns_setprio 0")
    spin(a, 19, 27, preissued=True)
    stamp(a, 8)
    a(f"""
    s_lshl_b32 s29, s67, 10
    s_add_u32 m0, s29, {QL}
    s_add_u32 s49, s48, 1024
    buffer_load_dwordx4 v1, s[16:19], s48 offen sc1 lds
    s_add_u32 m0, s29, {QL + 65536}
    s_mov_b32 s42, s46
    buffer_load_dwordx4 v1, s[16:19], s49 offen sc1 lds
    s_mov_b32 m0, s45
    """)
    for r in range(7):
        a("buffer_load_dwordx4 v1, s[16:19], s42 offen sc1 lds\nbuffer_load_dwordx4 v1, s[16:19], s42 offen offset:2048 sc1 lds")
        if r < 6: a("s_add_u32 s42, s42, 4096\ns_add_u32 m0, m0, 4096")
    a("W_done:")
    a("s_waitcnt vmcnt(10) lgkmcnt(0)\ns_barrier")
    stamp(a, 9)
    a(f"ds_read_b128 {vr(Q[0],4)}, v22 offset:{QL}\nds_read_b128 {vr(Q[1],4)}, v23 offset:{QL}")
    for k in range(8): a(f"ds_read_b128 {vr(CB+4*k,4)}, v21 offset:{k*1024}")
    def kf(i): return KB + 12*(i % 2)
    def loads(t):
        return [f"ds_read_b128 {vr(kf(t),4)}, v26 offset:{t*2048}", "s_mov_b64 exec, s[30:31]",
                f"ds_read_b128 {vr(kf(t)+4,4)}, v26 offset:{t*2048+1024}", f"ds_read_b128 {vr(kf(t)+8,4)}, v26 offset:{t*2048+1280}", "s_mov_b64 exec, -1"]
    a(f"""
    v_lshlrev_b32 v2, 5, v{VN}
    v_lshl_add_u32 v2, v{VH}, 4, v2     ; n*32 + hi*16
    v_mov_b32 v3, v{VH}
    s_add_u32 s28, s69, s68
    s_lshl_b32 s28, s28, 12
    s_lshl_b32 s29, s67, 10
    s_add_u32 s28, s28, s29
    s_add_u32 s28, s28, {BT}
    s_waitcnt lgkmcnt(0)
    """)
    for r in range(8): a(f"v_add_f32 v{CB+r}, v{CB+r}, v{CB+8+r}\nv_add_f32 v{CB+16+r}, v{CB+16+r}, v{CB+24+r}")
    for r in range(8): a(f"v_add_f32 v{CB+r}, v{CB+r}, v{CB+16+r}")
    for r in range(4): a(f"v_cvt_pk_bf16_f32 v{CB+8+r}, v{CB+2*r}, v{CB+2*r+1}")
    a(f"buffer_store_dwordx4 {vr(CB+8,4)}, v2, s[16:19], s28 offen sc1")
    srd(a, 12, 56, 524288)
    a(f"""
    v_lshrrev_b32 v16, 3, v0
    v_lshlrev_b32 v16, 10, v16
    v_and_b32 v17, 7, v0
    v_lshl_add_u32 v16, v17, 4, v16
    v_add_u32 v17, 7168, v16
    v_add_u32 v18, 14336, v16
    v_add_u32 v19, 21504, v16
    s_lshl_b32 s39, s3, 12
    s_add_u32 s39, s39, {SS}
    v_lshlrev_b32 v20, 9, v3
    v_bfe_u32 v21, v0, 2, 2
    v_lshl_add_u32 v20, v21, 7, v20
    v_bfe_u32 v21, v0, 4, 1
    v_lshl_add_u32 v20, v21, 5, v20
    v_and_b32 v21, 3, v0
    v_lshl_add_u32 v20, v21, 3, v20
    v_add_u32 v20, s39, v20
    s_mov_b32 s70, 0
    B_restart:
    s_lshl_b32 s40, s67, 17
    s_lshl_b32 s28, s64, 7
    s_add_u32 s40, s40, s28
    """)
    for x in loads(0): a(x)
    a("s_waitcnt lgkmcnt(0)")
    a(f"v_mfma_f32_32x32x16_bf16 {vr(S[0],16)}, {vr(kf(0),4)}, {vr(Q[0],4)}, {vr(NM[0],16)}")
    a(".p2align 3")
    slots = [(t, q) for t in range(32) for q in range(2)]
    p1, p2, p3 = 2, 5, 10
    def hook(t):
        if t == 3:
            a("s_waitcnt vmcnt(0)\ns_barrier")
            a("s_cmp_lg_u32 s70, 0\ns_cbranch_scc1 B_nob2\ns_mov_b32 m0, s33")
            for r in range(9):
                a("buffer_load_dwordx4 v1, s[16:19], s34 offen sc1 lds")
                if r < 8: a("s_add_u32 s34, s34, 4096\ns_add_u32 m0, m0, 4096")
            a(f"s_cmp_lg_u32 s3, 0\ns_cbranch_scc1 B_nob2\ns_lshl_b32 s28, s63, 5\ns_lshl_b32 s29, s64, 2\ns_add_u32 s28, s28, s29\ns_add_u32 s28, s28, {FBT}")
            flag_store(a, 28, 22, 23)
            a("B_nob2:")
        if t == 13:
            a("s_waitcnt vmcnt(0)\ns_barrier")
        if t in (8, 14, 18, 22):
            a("s_mov_b32 m0, s39")
            for j in range(4): a(f"buffer_load_dwordx4 v{16+j}, s[12:15], s40 offen offset:{j*1024} lds")
            a("s_add_u32 s40, s40, 32768")
        if t in (11, 17, 21, 25):
            r = (11, 17, 21, 25).index(t)
            a("s_waitcnt vmcnt(0)")
            for hd in range(2):
                for wc in range(2):
                    reg = WO + ((2*r+hd)*2 + wc)*4
                    a(f"ds_read_b64_tr_b16 {vr(reg,2)}, v20 offset:{hd*2048+wc*64}\nds_read_b64_tr_b16 {vr(reg+2,2)}, v20 offset:{hd*2048+1024+wc*64}")
    for n, (t, q) in enumerate(slots):
        cur, nxt = S[n & 1], S[(n+1) & 1]
        e = [f"v_exp_f32 v{cur+k}, v{cur+k}" for k in range(16)]
        for x in e[0:p1]: a(x)
        if n > 0:
            tp, qp = slots[n-1]
            a(f"v_smfmac_f32_32x32x32_bf16 {vr(O[qp],16)}, {vr(kf(tp)+8,4)}, {vr(nxt+8,8)}, v24")
        if q == 0:
            hook(t)
            if t < 31:
                for x in loads(t+1): a(x)
        for x in e[p1:p2]: a(x)
        if n + 1 < len(slots):
            tn, qn = slots[n+1]
            if qn == 0: a("s_waitcnt lgkmcnt(0)")
            a(f"v_mfma_f32_32x32x16_bf16 {vr(nxt,16)}, {vr(kf(tn),4)}, {vr(Q[qn],4)}, {vr(NM[qn],16)}")
        for x in e[p2:p3]: a(x)
        a(f"v_smfmac_f32_32x32x32_bf16 {vr(O[q],16)}, {vr(kf(t)+4,4)}, {vr(cur,8)}, v24")
        for x in e[p3:16]: a(x)
    a(f"v_smfmac_f32_32x32x32_bf16 {vr(O[1],16)}, {vr(kf(31)+8,4)}, {vr(S[1]+8,8)}, v24")
    stamp(a, 10)
    a(f"""
    v_add_u32 v27, s39, v1
    v_xor_b32 v28, 16384, v27
    v_mov_b32 v29, 0
    s_mov_b32 s28, {f32(2.0**60)}
    s_mov_b32 s29, {f32(2.0**-30)}
    """)
    for r in range(8): a(f"v_fma_f32 v29, v{O[0]+r}, 0, v29")
    a(f"v_cmp_nge_f32 s[42:43], s28, v{O[0]+8}\nv_cmp_nle_f32 s[44:45], s29, v{O[0]+8}")
    for k in range(3): a(f"ds_write_b128 v27, {vr(O[1]+4*k,4)} offset:{k*1024}")
    for r in range(8): a(f"v_fma_f32 v29, v{O[1]+r}, 0, v29")
    a(f"""
    v_cmp_nge_f32 s[46:47], s28, v{O[1]+8}
    v_cmp_nle_f32 s[48:49], s29, v{O[1]+8}
    v_cmp_u_f32 vcc, v29, v29
    s_or_b64 s[42:43], s[42:43], s[44:45]
    s_or_b64 s[46:47], s[46:47], s[48:49]
    s_or_b64 vcc, vcc, s[42:43]
    s_or_b64 vcc, vcc, s[46:47]
    s_cselect_b32 s28, 1, 0
    v_mov_b32 v29, s28
    ds_write_b32 v27, v29 offset:3072
    v_and_b32 v30, 7, v0
    v_lshlrev_b32 v30, 12, v30
    v_add_u32 v30, {SS}, v30
    s_waitcnt lgkmcnt(0)
    s_barrier
    ds_read_b32 v29, v30 offset:3072
    """)
    for k in range(3): a(f"ds_read_b128 {vr(S[0]+4*k,4)}, v28 offset:{k*1024}")
    a(f"""
    s_lshl_b32 s28, s35, 15
    s_lshl_b32 s29, s63, 10
    s_add_u32 s28, s28, s29
    s_add_u32 s28, s28, {OF}
    s_lshl_b32 s41, s35, 7
    s_lshl_b32 s29, s63, 2
    s_add_u32 s41, s41, s29
    s_add_u32 s41, s41, {FO}
    s_waitcnt lgkmcnt(0)
    v_cmp_ne_u32 vcc, 0, v29
    v_add_f32 v{O[0]+8}, v{O[0]+8}, v{S[0]+8}
    v_rcp_f32 v31, v{O[0]+8}
    s_cmp_lg_u32 s70, 0
    s_cselect_b64 vcc, 0, vcc
    s_cbranch_vccnz B_fallback
    """)
    for r in range(8): a(f"v_add_f32 v{O[0]+r}, v{O[0]+r}, v{S[0]+r}")
    for r in range(8): a(f"v_mul_f32 v{O[0]+r}, v{O[0]+r}, v31")
    for r in range(4): a(f"v_cvt_pk_bf16_f32 v{S[1]+r}, v{O[0]+2*r}, v{O[0]+2*r+1}")
    a(f"buffer_store_dwordx4 {vr(S[1],4)}, v1, s[16:19], s28 offen sc1")
    OFr, ACC, E, RD, ID, BFr = 128, [32, 48], 64, 80, 112, 120
    a(f"""
    s_lshl_b32 s42, s63, 1
    s_add_u32 s42, s42, s68          ; ttile
    v_and_b32 v2, 31, v0
    v_lshrrev_b32 v3, 5, v0
    s_lshl_b32 s28, s63, 5
    s_add_u32 s28, s28, {FBT}
    v_and_b32 v5, 7, v0
    v_lshl_add_u32 v4, v5, 2, s28
    s_lshl_b32 s28, s64, 7
    s_lshl_b32 s29, s67, 5
    s_add_u32 s28, s28, s29
    s_add_u32 s28, s28, {FBT}
    v_and_b32 v5, 7, v0
    v_lshlrev_b32 v5, 2, v5
    v_add_u32 v6, s28, v5
    v_cmp_gt_u32 vcc, 32, v0
    v_cndmask_b32 v4, v6, v4, vcc
    s_lshl_b32 s28, s42, 7
    s_add_u32 s28, s28, s29
    s_add_u32 s28, s28, {FO}
    v_add_u32 v5, s28, v5
    s_waitcnt vmcnt(0)
    """)
    flag_store(a, 41, 6, 7)
    stamp(a, 11)
    spin(a, 4, 6)
    a(f"""
    v_lshlrev_b32 v6, 2, v2
    s_lshl_b32 s28, s42, 7
    s_add_u32 s28, s28, {GG}
    buffer_load_dword v7, v6, s[16:19], s28 offen sc1
    v_and_b32 v6, 15, v0
    v_lshlrev_b32 v6, 12, v6
    v_lshl_add_u32 v6, v3, 4, v6
    s_lshl_b32 s28, s64, 18
    s_lshl_b32 s29, s67, 16
    s_add_u32 s28, s28, s29
    s_lshl_b32 s29, s63, 5
    s_add_u32 s28, s28, s29
    s_lshl_b32 s29, s68, 11
    s_add_u32 s28, s28, s29
    s_add_u32 s28, s28, {BT}
    buffer_load_dwordx4 {vr(BFr,4)}, v6, s[16:19], s28 offen sc1
    buffer_load_dwordx4 {vr(BFr+4,4)}, v6, s[16:19], s28 offen offset:1024 sc1
    buffer_load_dword v8, v5, s[16:19], 0 offen sc1
    v_lshrrev_b32 v9, 3, v2
    v_bfe_u32 v10, v2, 1, 1
    v_lshl_add_u32 v9, v9, 1, v10
    v_bfe_u32 v10, v2, 2, 1
    v_xor_b32 v10, v10, v3
    v_lshl_add_u32 v9, v10, 4, v9
    v_and_b32 v10, 1, v2
    v_lshlrev_b32 v10, 4, v10
    v_mov_b32 v11, 0x3f80
    v_lshlrev_b32 v11, v10, v11
    """)
    for k in range(8): a(f"v_cmp_eq_u32 vcc, {k}, v9\nv_cndmask_b32 v{ID+k}, 0, v11, vcc")
    a(f"""
    s_lshl_b32 s43, s42, 15
    s_lshl_b32 s29, s67, 13
    s_add_u32 s43, s43, s29
    s_add_u32 s43, s43, {OF}
    s_add_u32 s44, s43, 4096
    s_lshl_b32 s28, s68, 16
    s_lshl_b32 s29, s67, 11
    s_add_u32 s28, s28, s29
    v_add_u32 v17, s28, v1
    s_lshl_b32 s28, s68, 16
    s_lshl_b32 s29, s67, 13
    s_add_u32 s28, s28, s29
    v_add_u32 v18, s28, v1
    """)
    srd(a, 20, 54, 2097152)
    spin(a, 5, 8, preissued=True)
    stamp(a, 12)
    for i in range(8):
        a(f"buffer_load_dwordx4 {vr(OFr+4*i,4)}, v1, s[16:19], s{43 + i//4} offen offset:{(i%4)*1024} sc1")
    a(f"v_mfma_f32_32x32x16_bf16 {vr(E,16)}, {vr(BFr,4)}, {vr(ID,4)}, 0")
    a(f"v_mfma_f32_32x32x16_bf16 {vr(E,16)}, {vr(BFr+4,4)}, {vr(ID+4,4)}, {vr(E,16)}")
    a(f"""
    v_sub_f32 v8, 1.0, v7
    v_cvt_pk_bf16_f32 v8, v8, v8
    v_lshlrev_b32 v8, 16, v8
    v_lshlrev_b32 v9, 10, v2
    v_lshl_add_u32 v9, v3, 4, v9
    s_lshl_b32 s28, s42, 15
    s_lshl_b32 s29, s64, 7
    s_add_u32 s28, s28, s29
    s_lshl_b32 s29, s67, 5
    s_add_u32 s28, s28, s29
    """)
    for r in range(8): a(f"v_mul_f32 v{E+r}, v{E+r}, v8")
    for i in range(8):
        a(f"s_waitcnt vmcnt({7-i})")
        for wc in range(2):
            a(f"v_mfma_f32_32x32x16_bf16 {vr(ACC[wc],16)}, {vr(WO+(2*i+wc)*4,4)}, {vr(OFr+4*i,4)}, {'0' if i == 0 else vr(ACC[wc],16)}")
    for j in range(4):
        for h in range(2):
            a(f"ds_write_b128 v17, {vr(ACC[0]+8*j+4*h,4)} offset:{j*8192+h*1024}")
    a("s_waitcnt lgkmcnt(0)\ns_barrier")
    for k in range(8): a(f"ds_read_b128 {vr(RD+4*k,4)}, v18 offset:{k*1024}")
    a("s_waitcnt lgkmcnt(4)")
    for r in range(8): a(f"v_add_f32 v{RD+r}, v{RD+r}, v{RD+8+r}")
    a("s_waitcnt lgkmcnt(0)")
    for r in range(8): a(f"v_add_f32 v{RD+16+r}, v{RD+16+r}, v{RD+24+r}")
    for r in range(8): a(f"v_add_f32 v{RD+r}, v{RD+r}, v{RD+16+r}")
    for r in range(8): a(f"v_fma_f32 v{RD+r}, v{RD+r}, v7, v{E+r}")
    for r in range(4): a(f"v_cvt_pk_bf16_f32 v{12+r}, v{RD+2*r}, v{RD+2*r+1}")
    a(f"""
    v_permlane32_swap_b32 v12, v14
    v_permlane32_swap_b32 v13, v15
    buffer_store_dwordx4 v[12:15], v9, s[20:23], s28 offen
    s_or_b32 s28, s2, s3
    s_cmp_lg_u32 s28, 0
    s_cbranch_scc1 L_fin
    s_mov_b32 s28, {FL}
    """)
    flag_store(a, 28, 6, 7)
    a("L_fin:")
    if OPT.get("padto"):
        a(f"L_pad:\ns_memrealtime s[4:5]\ns_waitcnt lgkmcnt(0)\ns_sub_u32 s4, s4, s72\ns_cmp_lt_u32 s4, {OPT['padto']*100}\ns_cbranch_scc1 L_pad")
    if STAMP: a("s_waitcnt vmcnt(0)")
    stamp_flush(a)
    a("L_end:\ns_endpgm")
    a(f"""
    B_fallback:
    s_barrier
    s_mov_b32 s70, 1
    s_mov_b32 s28, 64
    v_mov_b32 v27, v1
    v_mov_b32 v28, 0xff800000
    v_mov_b32 v29, 0xff800000
    B_maxloop:
    ds_read_b128 {vr(KB,4)}, v27
    v_add_u32 v27, 2048, v27
    s_waitcnt lgkmcnt(0)
    v_mfma_f32_32x32x16_bf16 {vr(S[0],16)}, {vr(KB,4)}, {vr(Q[0],4)}, 0
    v_mfma_f32_32x32x16_bf16 {vr(S[1],16)}, {vr(KB,4)}, {vr(Q[1],4)}, 0
    s_sub_u32 s28, s28, 1
    s_cmp_lg_u32 s28, 0
    """)
    for q in range(2):
        for k in range(8): a(f"v_max3_f32 v{28+q}, v{28+q}, v{S[q]+2*k}, v{S[q]+2*k+1}")
    a("s_cbranch_scc1 B_maxloop")
    for q in range(2):
        a(f"v_mov_b32 v30, v{28+q}\nv_permlane32_swap_b32 v{28+q}, v30\nv_max_f32 v30, v{28+q}, v30\nv_sub_f32 v30, 0, v30")
        for r in range(16): a(f"v_mov_b32 v{NM[q]+r}, v30")
    for r in range(O[0], O[0]+32): a(f"v_mov_b32 v{r}, 0")
    a("s_branch B_restart\nL_codeend:")

def main(out):
    a = Asm()
    build(a)
    for b in a.check_branches(): print("BRANCH HAZARD:", b)
    K = NAME + "_kernel"
    head = f"; generated by work/gen/gen3.py\n; @launch grid=(256,1,1) block=(512,1,1) lds=163840\n" + '.amdgcn_target "amdgcn-amd-amdhsa--gfx950"\n.text\n'
    tail = f'''.section .rodata,"a"
.p2align 6
.amdhsa_kernel {K}
  .amdhsa_next_free_vgpr 256
  .amdhsa_next_free_sgpr {102 if STAMP else 72}
  .amdhsa_accum_offset 256
  .amdhsa_group_segment_fixed_size 0
  .amdhsa_kernarg_size 128
  .amdhsa_user_sgpr_count 2
  .amdhsa_user_sgpr_kernarg_segment_ptr 1
  .amdhsa_system_sgpr_workgroup_id_x 1
.end_amdhsa_kernel
'''
    open(out, "w").write(head + a.text() + tail)

if __name__ == "__main__":
    if "--stamp" in sys.argv:
        STAMP = True; sys.argv.remove("--stamp")
    for x in list(sys.argv):
        if x.startswith("-D"):
            k, _, v = x[2:].partition("="); OPT[k] = int(v) if v else 1; sys.argv.remove(x)
    main(sys.argv[1] if len(sys.argv) > 1 else f"cdna_kernels/{NAME}.s")
```

```python
import sys, struct, math, re
from asmlib import Asm

NAME = "gated_mix__softmax_full_mha__ssm_conv_s4__prompt"
def f32(x): return "0x%08x" % struct.unpack("<I", struct.pack("<f", x))[0]
LOG2E = 1.4426950408889634
QF, KV, OF, BT, UT, GG = 0x000000, 0x200000, 0x600000, 0x800000, 0xC00000, 0xF00000
FL = 0xF10000
FUT, FKV, FBT, FO = FL + 0x1000, FL + 0x2000, FL + 0x3000, FL + 0x4000
ST = 0xF80000
WS_BYTES = 0x1000000
STAMP = False
OPT = {}
SPIN = 200000

def vr(b, n): return f"v[{b}:{b+n-1}]"
def srd(a, d, base, nbytes):
    a(f"s_mov_b32 s{d}, s{base}\ns_mov_b32 s{d+1}, s{base+1}\ns_mov_b32 s{d+2}, {hex(nbytes)}\ns_mov_b32 s{d+3}, 0x00020000")
NST = 14
def stamp(a, k, mode=None):
    if mode != OPT.get("st") and k not in (0, NST-1): return
    if STAMP: a(f"{'s_memtime' if OPT.get('cyc') else 's_memrealtime'} s[{72+2*k}:{73+2*k}]")
def stamp_flush(a):
    if not STAMP: return
    stamp(a, NST-1)
    a(f"s_lshl_b32 s4, s2, 9\ns_lshl_b32 s5, s3, 6\ns_add_u32 s4, s4, s5\ns_add_u32 s4, s4, {ST}\ns_waitcnt lgkmcnt(0)\ns_mov_b64 exec, 1\nv_mov_b32 v0, 0")
    for k in range(NST):
        a(f"v_mov_b32 v1, s{72+2*k}\nbuffer_store_dword v1, v0, s[16:19], s4 offen offset:{4*k}")
    if OPT.get("dbg") is not None:
        a(f"s_cmp_lg_u32 s2, {OPT['dbg']}\ns_cbranch_scc1 L_end\ns_cmp_lg_u32 s3, {OPT.get('dbgw', 4)}\ns_cbranch_scc1 L_end\ns_load_dwordx2 s[4:5], s[0:1], 112\ns_waitcnt lgkmcnt(0)")
        for k in range(NST):
            a(f"s_sub_u32 s6, s{72+2*k}, s72\nv_mov_b32 v1, s6\nglobal_store_dword v0, v1, s[4:5] offset:{4*k}")

class VM:
    def __init__(self, a): self.a = a; self.n = 0
    def op(self, text):
        self.a(text); self.n += 1; return self.n
    def wait(self, mark, extra=""):
        left = self.n - mark
        assert 0 <= left <= 63, left
        self.a(f"s_waitcnt vmcnt({left}){extra}")

def cmuls(a, jobs):
    for (d, x, y) in jobs:
        a(f"v_pk_mul_f32 {vr(d,2)}, {vr(x,2)}, {vr(y,2)} op_sel:[0,0] op_sel_hi:[0,1]")
    for (d, x, y) in jobs:
        a(f"v_pk_fma_f32 {vr(d,2)}, {vr(x,2)}, {vr(y,2)}, {vr(d,2)} op_sel:[1,1,0] op_sel_hi:[1,0,1] neg_lo:[1,0,0]")

_lab = [0]
def spin(a, vaddr, vtmp, preissued=False):
    _lab[0] += 1; L = f"SP{_lab[0]}"
    a(f"s_mov_b32 s71, {SPIN}")
    if preissued: a(f"s_branch {L}_chk")
    a(f"""
    {L}:
    buffer_load_dword v{vtmp}, v{vaddr}, s[16:19], 0 offen sc1
    {L}_chk:
    s_waitcnt vmcnt(0)
    v_cmp_ne_u32 vcc, s60, v{vtmp}
    s_sub_u32 s71, s71, 1
    s_cselect_b64 vcc, 0, vcc
    s_cbranch_vccnz {L}
    """)

def flag_store(a, soff_sreg, vtmp0, vtmp1):
    a(f"""
    v_mov_b32 v{vtmp0}, 0
    v_mov_b32 v{vtmp1}, s60
    s_mov_b64 exec, 1
    buffer_store_dword v{vtmp1}, v{vtmp0}, s[16:19], s{soff_sreg} offen sc1
    s_mov_b64 exec, -1
    """)

XRING, WRING = 0, 32768
SS = 131072
KGS = SS
UL, RL = SS, SS + 10240
QL = 61440
EXO = 28672
CS, CB, CP = [152, 176, 192, 208], 192, [224, 240]
Q = [4, 8]; S = [32, 48]; O = [64, 80]; NM = [96, 112]; KB = 128; WO = 160
VN, VH, VA0, VA1, VB = 14, 15, 16, 17, 18
def wsetup():
    t = f"""
    v_and_b32 v{VN}, 31, v0
    v_lshrrev_b32 v{VH}, 5, v0
    s_mul_i32 s42, s68, 8576
    s_lshl_b32 s43, s67, 9
    s_add_u32 s42, s42, s43
    s_add_u32 s42, s42, {RL}
    v_lshlrev_b32 v{VA0}, 3, v{VH}
    v_sub_u32 v{VA0}, v{VA0}, v{VN}
    v_add_u32 v{VA0}, 31, v{VA0}
    v_and_b32 v{VA1}, 1, v{VA0}
    v_lshrrev_b32 v{VA0}, 1, v{VA0}
    v_lshlrev_b32 v{VA0}, 2, v{VA0}
    v_mul_u32_u24 v{VA1}, 4288, v{VA1}
    v_add3_u32 v{VA0}, v{VA0}, v{VA1}, s42
    v_add_u32 v{VA1}, 2048, v{VA0}
    s_mul_i32 s42, s68, 5120
    s_mul_i32 s43, s67, {8*80}
    s_add_u32 s42, s42, s43
    s_add_u32 s42, s42, {UL - 31*80}
    v_mul_u32_u24 v{VB}, 80, v{VN}
    v_lshl_add_u32 v{VB}, v{VH}, 4, v{VB}
    v_add_u32 v{VB}, s42, v{VB}
    s_lshl_b32 s44, s67, 3
    s_sub_u32 s44, 31, s44
    s_bfe_u32 s45, s3, 0x10001
    s_lshl_b32 s45, s45, 16
    s_and_b32 s42, s3, 1
    s_lshl_b32 s42, s42, 10
    s_add_u32 s45, s45, s42
    s_lshl_b32 s46, s63, 17
    s_add_u32 s46, s46, s45
    s_add_u32 s46, s46, {KV}"""
    L = [x.strip() for x in t.strip().split("\n")]
    L += [f"v_mov_b32 v{b+r}, 0" for b in CS for r in range(4)]
    return L

def rexp_read(a):
    a(f"""
    s_lshr_b32 s42, s67, 1
    s_lshl_b32 s42, s42, 13
    s_add_u32 s42, s42, {KEX}
    v_lshl_add_u32 v1, v0, 4, s42
    """)
    for q in range(8): a(f"ds_read_b128 {vr(224+4*q,4)}, v1 offset:{q*1024}")
def rexp_addr(a, b):
    a(f"""
    v_and_b32 v1, 31, v0
    v_lshlrev_b32 v1, 4, v1
    v_lshrrev_b32 v2, 5, v0
    s_lshr_b32 s42, s67, 1
    s_mul_i32 s42, s42, 8576
    s_and_b32 s43, s67, 1
    s_mul_i32 s43, s43, 4284
    s_add_u32 s42, s42, s43
    s_add_u32 s42, s42, {RL}
    v_lshl_add_u32 v{b+0}, v2, 3, v1
    v_sub_u32 v{b+0}, {2*2044-512}, v{b+0}
    v_lshl_add_u32 v{b+1}, v2, 9, v1
    v_sub_u32 v{b+1}, {2*1528}, v{b+1}
    v_lshl_add_u32 v{b+2}, v2, 10, v1
    v_sub_u32 v{b+2}, {2*760}, v{b+2}
    v_add_u32 v{b+0}, s42, v{b+0}
    v_add_u32 v{b+1}, s42, v{b+1}
    v_add_u32 v{b+2}, s42, v{b+2}
    v_lshl_add_u32 v{b+3}, v0, 2, s42
    """)
def rexp_calc(a, L):
    D = 224
    r = lambda k: f"v{D+k}"
    a(f"""
    v_and_b32 v5, 1, v0
    v_cmp_eq_u32 vcc, 0, v5
    v_cmp_eq_u32 s[48:49], 0, v0
    s_waitcnt lgkmcnt(0)
    """)
    for k in range(15): a(f"v_add_f32 v{D+k}, v{D+k}, v{D+16+k}")
    a(f"""
    v_cndmask_b32 v5, {r(11)}, {r(10)}, vcc
    v_cndmask_b32 v6, {r(13)}, {r(12)}, vcc
    s_cmp_lg_u32 s34, 0
    s_cbranch_scc1 {L}_c1
    v_mov_b32 v80, 0
    v_cvt_pk_bf16_f32 v64, {r(3)}, {r(2)}
    v_cvt_pk_bf16_f32 v65, {r(1)}, {r(0)}
    v_cvt_pk_bf16_f32 v66, {r(6)}, {r(5)}
    v_cvt_pk_bf16_f32 v67, {r(4)}, {r(4)}
    v_cvt_pk_bf16_f32 v68, {r(9)}, {r(9)}
    v_cvt_pk_bf16_f32 v69, {r(8)}, {r(8)}
    v_cvt_pk_bf16_f32 v70, {r(8)}, {r(7)}
    v_cvt_pk_bf16_f32 v71, {r(7)}, {r(7)}
    v_cvt_pk_bf16_f32 v72, {r(11)}, {r(11)}
    v_cvt_pk_bf16_f32 v73, {r(11)}, v5
    v_cvt_pk_bf16_f32 v74, {r(10)}, {r(10)}
    v_mov_b32 v75, v74
    v_cvt_pk_bf16_f32 v76, {r(13)}, {r(13)}
    v_cvt_pk_bf16_f32 v77, {r(13)}, v6
    v_cvt_pk_bf16_f32 v78, {r(12)}, {r(12)}
    v_mov_b32 v79, v78
    s_branch {L}_e
    {L}_c1:
    v_cvt_pk_bf16_f32 v80, {r(0)}, 0
    v_cndmask_b32 v80, 0, v80, s[48:49]
    v_cvt_pk_bf16_f32 v64, {r(14)}, {r(3)}
    v_cvt_pk_bf16_f32 v65, {r(2)}, {r(1)}
    v_cvt_pk_bf16_f32 v66, {r(6)}, {r(6)}
    v_cvt_pk_bf16_f32 v67, {r(5)}, {r(4)}
    v_cvt_pk_bf16_f32 v68, {r(9)}, {r(9)}
    v_cvt_pk_bf16_f32 v69, {r(9)}, {r(8)}
    v_cvt_pk_bf16_f32 v70, {r(8)}, {r(8)}
    v_cvt_pk_bf16_f32 v71, {r(7)}, {r(7)}
    v_cvt_pk_bf16_f32 v72, {r(11)}, {r(11)}
    v_mov_b32 v73, v72
    v_cvt_pk_bf16_f32 v74, v5, {r(10)}
    v_cvt_pk_bf16_f32 v75, {r(10)}, {r(10)}
    v_cvt_pk_bf16_f32 v76, {r(13)}, {r(13)}
    v_mov_b32 v77, v76
    v_cvt_pk_bf16_f32 v78, v6, {r(12)}
    v_cvt_pk_bf16_f32 v79, {r(12)}, {r(12)}
    {L}_e:
    """)
def rexp_write(a, b):
    a(f"""
    s_cmp_lg_u32 s34, 0
    s_cbranch_scc1 RW_c1
    ds_write_b64 v{b+0}, v[64:65] offset:512
    ds_write_b64 v{b+0}, v[66:67]
    ds_write_b128 v{b+1}, v[68:71]
    ds_write_b128 v{b+2}, v[72:75] offset:512
    ds_write_b128 v{b+2}, v[76:79]
    s_branch RW_e
    RW_c1:
    ds_write2_b32 v{b+0}, v64, v65 offset0:128 offset1:129
    ds_write2_b32 v{b+0}, v66, v67 offset0:0 offset1:1
    ds_write2_b32 v{b+1}, v68, v69 offset0:0 offset1:1
    ds_write2_b32 v{b+1}, v70, v71 offset0:2 offset1:3
    ds_write2_b32 v{b+2}, v72, v73 offset0:128 offset1:129
    ds_write2_b32 v{b+2}, v74, v75 offset0:130 offset1:131
    ds_write2_b32 v{b+2}, v76, v77 offset0:0 offset1:1
    ds_write2_b32 v{b+2}, v78, v79 offset0:2 offset1:3
    RW_e:
    s_mov_b32 exec_hi, 0
    ds_write_b32 v{b+3}, v80 offset:4096
    s_mov_b64 exec, -1
    """)

SLOT = [0, 1, 2, 3, 4, 0, 1, 2]
def xoff(sl): return sl*8192 if sl < 4 else SS
def woff(sl): return WRING + sl*24576 if sl < 4 else SS + 8192
KEX = WRING + 3*24576

def build(a):
    K = NAME + "_kernel"
    a(f".globl {K}\n.p2align 8\n.type {K},@function\n{K}:")
    a("s_cmp_ge_u32 s2, 256\ns_cbranch_scc1 L_end")
    stamp(a, 0)
    a(f"""
    s_load_dwordx4 s[4:7], s[0:1], 0
    s_load_dwordx8 s[36:43], s[0:1], 32
    s_load_dwordx8 s[44:51], s[0:1], 64
    s_load_dwordx2 s[58:59], s[0:1], 120
    s_load_dwordx4 s[52:55], s[0:1], 96
    s_load_dwordx2 s[56:57], s[0:1], 16
    s_getpc_b64 s[24:25]
    A_pc:
    v_lshlrev_b32 v1, 7, v0
    v_min_u32 v1, L_codeend-A_pc-4, v1
    global_load_dword v255, v1, s[24:25]
    v_lshrrev_b32 v1, 6, v0
    v_and_b32 v0, 63, v0
    v_readfirstlane_b32 s3, v1
    s_and_b32 s22, s2, 7             ; xcd
    s_lshr_b32 s23, s2, 3            ; i
    s_and_b32 s25, s23, 3
    s_lshr_b32 s64, s23, 2
    s_and_b32 s61, s22, 1
    s_lshl_b32 s61, s61, 2
    s_add_u32 s61, s61, s25          ; hq
    s_lshr_b32 s62, s22, 1
    s_lshl_b32 s62, s62, 3
    s_add_u32 s62, s62, s64
    s_lshl_b32 s63, s22, 2
    s_add_u32 s63, s63, s25
    s_and_b32 s67, s3, 3             ; w4
    s_lshr_b32 s68, s3, 2            ; hf
    s_lshl_b32 s69, s63, 4
    s_lshl_b32 s26, s64, 1
    s_add_u32 s69, s69, s26
    s_lshr_b32 s33, s67, 1
    s_and_b32 s34, s67, 1
    s_cmp_ge_u32 s3, 4
    s_cbranch_scc1 A_helper
    s_add_u32 s35, s69, s33          ; channel d
    s_lshl_b32 s28, s35, 8
    s_lshl_b32 s29, s34, 7
    s_add_u32 s28, s28, s29
    v_lshl_add_u32 v1, v0, 1, s28
    s_lshl_b32 s29, s35, 1
    v_mov_b32 v2, s29
    """)
    vmc = VM(a)
    for r in range(20, 28): a(f"v_mov_b32 v{r}, 0")
    a("s_waitcnt lgkmcnt(0)")
    vmc.op("global_load_short_d16_hi v26, v2, s[48:49]")
    for k in range(2): m_p1 = vmc.op(f"global_load_short_d16_hi v{20+k}, v1, s[{36+2*k}:{37+2*k}]")
    for k in range(2, 6): vmc.op(f"global_load_short_d16_hi v{20+k}, v1, s[{36+2*k}:{37+2*k}]")
    m_par = vmc.op("global_load_short_d16_hi v27, v2, s[50:51]")
    a("s_branch A_compute")

    a("A_helper:")
    vm = VM(a)
    a(f"""
    s_lshl_b32 s20, s62, 16
    s_lshl_b32 s21, s61, 7
    s_lshl_b32 s26, s67, 5
    s_add_u32 s26, s26, s21
    s_add_u32 s26, s26, s20
    s_lshl_b32 s27, s67, 11          ; w4*2048
    s_add_u32 m0, s27, {3*8192}
    v_lshrrev_b32 v1, 1, v0
    v_lshlrev_b32 v5, 10, v1
    v_and_b32 v2, 1, v0
    v_lshl_add_u32 v5, v2, 4, v5
    v_add_u32 v6, 31744, v5
    s_lshl_b32 s35, s25, 1
    s_add_u32 s35, s35, s62
    s_lshr_b32 s24, s61, 2
    s_add_u32 s35, s35, s24
    s_and_b32 s35, s35, 7
    s_lshl_b32 s24, s67, 14
    s_add_u32 s20, s20, s24
    s_mul_i32 s24, s67, 49152
    s_add_u32 s21, s21, s24
    s_mul_i32 s32, s67, 6144
    v_lshrrev_b32 v1, 3, v0
    v_and_b32 v3, 7, v0
    v_lshrrev_b32 v4, 4, v0
    v_xor_b32 v7, v3, v4
    v_lshlrev_b32 v2, 10, v1
    v_lshl_add_u32 v8, v7, 4, v2
    v_xor_b32 v9, 64, v8
    v_add_u32 v9, 7168, v9
    v_and_b32 v4, 1, v4
    v_lshlrev_b32 v4, 2, v4
    v_xor_b32 v7, v3, v4
    v_mul_u32_u24 v2, 3072, v1
    v_lshl_add_u32 v12, v7, 4, v2
    s_waitcnt lgkmcnt(0)
    """)
    srd(a, 8, 4, 2097152)
    vm.op("buffer_load_dwordx4 v5, s[8:11], s26 offen lds")
    m_ut = vm.op("buffer_load_dwordx4 v6, s[8:11], s26 offen offset:1024 lds")
    srd(a, 12, 6, 1572864)
    def dma(c):
        slot = SLOT[c]
        a(f"s_lshl_b32 s28, s35, 7\ns_add_u32 s28, s28, s20\ns_add_u32 m0, s27, {xoff(slot)}\ns_mul_i32 s30, s35, 196608")
        for i in range(2): vm.op(f"buffer_load_dwordx4 v{8+i}, s[8:11], s28 offen offset:{i*1024} lds")
        a(f"s_add_u32 s30, s30, s21\ns_add_u32 m0, s32, {woff(slot)}\ns_add_u32 s35, s35, 1")
        for m in range(3): vm.op(f"buffer_load_dwordx4 v12, s[12:15], s30 offen offset:{m*1024} lds")
        a(f"s_add_u32 s30, s30, 24576\ns_add_u32 m0, s32, {woff(slot) + 3072}\ns_and_b32 s35, s35, 7")
        for m in range(3): mk = vm.op(f"buffer_load_dwordx4 v12, s[12:15], s30 offen offset:{m*1024} lds")
        return mk
    mc = {}
    NPRE = OPT.get("npre", 2)
    for c in range(NPRE): mc[c] = dma(c)
    a(f"s_mov_b32 s24, {FL}\ns_load_dword s60, s[58:59], s24")
    srd(a, 16, 58, WS_BYTES)
    a(f"""
    s_add_u32 s24, s27, {3*8192}
    v_lshrrev_b32 v4, 4, v0          ; g
    v_and_b32 v7, 15, v0             ; i
    v_lshlrev_b32 v5, 8, v4
    v_lshl_add_u32 v5, v7, 3, v5
    v_add_u32 v5, s24, v5
    v_lshlrev_b32 v6, 7, v7
    v_lshl_add_u32 v6, v4, 4, v6
    v_add_u32 v6, s24, v6
    v_lshl_add_u32 v10, v0, 4, s24
    v_lshlrev_b32 v2, 12, v1
    v_lshl_add_u32 v11, v3, 4, v2    ; UT store voff
    s_lshl_b32 s65, s61, 2
    s_add_u32 s65, s65, s67
    s_lshl_b32 s24, s65, 16
    s_lshl_b32 s25, s62, 7
    s_add_u32 s24, s24, s25
    s_add_u32 s24, s24, {UT}
    s_add_u32 s25, s24, 32768
    s_lshl_b32 s65, s65, 7
    s_lshl_b32 s26, s62, 2
    s_add_u32 s65, s65, s26
    s_add_u32 s65, s65, {FUT}
    s_waitcnt lgkmcnt(0)
    s_mul_i32 s60, s60, 0x9E3779B1
    s_add_u32 s60, s60, 0x7F4A7C15
    """)
    vm.wait(m_ut)
    stamp(a, 1); stamp(a, 1, 1)
    for k in range(4): a(f"ds_read_b64_tr_b16 {vr(64+2*k,2)}, v5 offset:{(k>>1)*1024 + (k&1)*128}")
    a("s_waitcnt lgkmcnt(0)\nds_write_b128 v6, v[64:67]\nds_write_b128 v6, v[68:71] offset:64\nds_read_b128 v[72:75], v10\nds_read_b128 v[76:79], v10 offset:1024\ns_waitcnt lgkmcnt(1)")
    vm.op("buffer_store_dwordx4 v[72:75], v11, s[16:19], s24 offen sc1")
    a("s_waitcnt lgkmcnt(0)")
    m_us = vm.op("buffer_store_dwordx4 v[76:79], v11, s[16:19], s25 offen sc1")
    for c in range(NPRE, 3): mc[c] = dma(c)
    stamp(a, 2)
    def gate_loads():
        a(f"""
        s_lshl_b32 s31, s63, 6
        s_lshl_b32 s24, s64, 3
        s_add_u32 s31, s31, s24
        s_lshl_b32 s24, s67, 1
        s_add_u32 s31, s31, s24
        s_lshl_b32 s24, s31, 10
        v_lshlrev_b32 v3, 5, v0
        v_and_b32 v4, 0x3ff, v3
        """)
        vm.op("buffer_load_dwordx4 v[28:31], v3, s[8:11], s24 offen")
        vm.op("buffer_load_dwordx4 v[32:35], v3, s[8:11], s24 offen offset:16")
        vm.op("global_load_dwordx4 v[36:39], v4, s[52:53]")
        vm.op("global_load_dwordx4 v[40:43], v4, s[52:53] offset:16")
    def uaddr():
        a(f"""
        s_lshl_b32 s24, s63, 7
        s_add_u32 s24, s24, {FUT}
        v_lshl_add_u32 v58, v{VN}, 2, s24
        s_lshr_b32 s24, s63, 1
        s_lshl_b32 s24, s24, 8
        s_add_u32 s24, s24, {FKV}
        v_lshl_add_u32 v19, v0, 2, s24
        s_lshl_b32 s24, s34, 7
        """)
        for k in range(3):
            a(f"v_add_u32 v1, s24, v0\nv_add_u32 v1, {64*k}, v1\nv_mul_u32_u24 v2, 13108, v1\nv_lshrrev_b32 v2, 16, v2\nv_sub_u32 v1, v1, v2\nv_lshlrev_b32 v{20+k}, 4, v1")
    ws = wsetup()
    for c in range(8):
        vm.wait(mc[c])
        stamp(a, 2+c, 1)
        a("s_barrier")
        if c == 0: stamp(a, 3)
        for k in {0: [3], 1: [4, 5], 2: [6], 3: [7]}.get(c, []): mc[k] = dma(k)
        if c == 0:
            vm.wait(m_us)
            flag_store(a, 65, 56, 57); vm.n += 1
        if c == 3:
            for x in ws[:2]: a(x)
            uaddr()
        if c == 5:
            for x in ws[2:]: a(x)
            rexp_addr(a, 60)
        if c == 6:
            rexp_read(a)
            rexp_calc(a, "RA")
        if c == 4:
            vm.op("buffer_load_dword v59, v58, s[16:19], 0 offen sc1")
            gate_loads()
    spin(a, 58, 59, preissued=True)
    a(f"""
    s_add_u32 s24, s69, s33
    s_lshl_b32 s29, s24, 12
    s_add_u32 s29, s29, {UT}
    s_mul_i32 s24, s33, 5120
    s_lshl_b32 s25, s34, 11
    s_add_u32 s24, s24, s25
    s_add_u32 m0, s24, {UL}
    """)
    for k in range(3):
        a(f"buffer_load_dwordx4 v{20+k}, s[16:19], s29 offen sc1 lds")
        if k < 2: a("s_add_u32 m0, m0, 1024")
    stamp(a, 4); stamp(a, 10, 1)
    rexp_write(a, 60)
    a("v_mov_b32 v54, 0")
    for k in range(8): a(f"v_dot2c_f32_bf16 v54, v{28+k}, v{36+k}")
    a("s_nop 2")
    for sh in (1, 2, 4, 8): a(f"v_add_f32_dpp v54, v54, v54 row_shr:{sh} row_mask:0xf bank_mask:0xf bound_ctrl:0")
    a("v_add_f32_dpp v54, v54, v54 row_bcast:15 row_mask:0xa bank_mask:0xf")
    a(f"""
    v_cvt_pk_bf16_f32 v54, v54, v54
    v_lshlrev_b32 v54, 16, v54
    v_mul_f32 v54, {f32(-LOG2E)}, v54
    v_exp_f32 v54, v54
    v_add_f32 v54, 1.0, v54
    v_rcp_f32 v54, v54
    v_cvt_pk_bf16_f32 v54, v54, v54
    v_lshlrev_b32 v54, 16, v54
    v_lshlrev_b32 v55, 2, v{VH}
    s_lshl_b32 s31, s31, 2
    s_add_u32 s31, s31, {GG}
    v_lshlrev_b32 v1, 4, v0
    s_waitcnt vmcnt(0)
    s_mov_b32 exec_lo, 0x80000000
    s_mov_b32 exec_hi, 0x80000000
    buffer_store_dword v54, v55, s[16:19], s31 offen sc1
    s_mov_b64 exec, -1
    s_setprio 1
    s_branch W_start
    """)

    a("A_compute:")
    vm = vmc
    a(f"s_mov_b32 s24, {FL}\ns_load_dword s60, s[58:59], s24")
    srd(a, 16, 58, WS_BYTES)
    a(f"""
    v_and_b32 v3, 3, v0
    v_lshrrev_b32 v4, 5, v0
    v_bfe_u32 v2, v0, 2, 2
    v_bfe_u32 v5, v0, 4, 1
    v_lshlrev_b32 v1, 5, v5
    v_lshl_add_u32 v6, v3, 3, v1            ; (g&1)*32 + (i&3)*8
    v_lshl_add_u32 v1, v4, 9, v6
    v_lshl_add_u32 v13, v2, 6, v1
    s_lshl_b32 s66, s67, 13
    s_add_u32 s66, s66, {KGS}
    v_bfe_u32 v1, v0, 1, 2
    v_lshlrev_b32 v1, 4, v1
    v_lshl_add_u32 v1, v0, 6, v1
    v_add_u32 v14, s66, v1
    v_xor_b32 v15, 16, v14
    v_xor_b32 v16, 32, v14
    v_xor_b32 v17, 48, v14
    v_bfe_u32 v7, v0, 3, 1
    v_lshlrev_b32 v1, 4, v7
    v_xor_b32 v18, v13, v1
    v_add_u32 v18, s66, v18
    v_xor_b32 v19, 32, v18
    v_add_u32 v19, 256, v19
    s_lshl_b32 s29, s67, 12
    s_add_u32 s29, s29, {KEX}
    v_lshl_add_u32 v62, v0, 4, s29
    v_mul_u32_u24 v1, 3072, v4
    v_lshl_add_u32 v1, v2, 7, v1
    v_xor_b32 v7, s33, v7
    v_lshl_add_u32 v1, v7, 6, v1
    v_add_u32 v1, v1, v6
    v_add_u32 v12, {WRING}, v1
    v_add_u32 v13, {WRING + 49152}, v1
    v_add_u32 v63, {SS + 8192}, v1
    s_lshl_b32 s29, s34, 12
    v_and_b32 v1, 31, v0
    v_bfe_u32 v2, v0, 1, 3
    v_xor_b32 v2, v2, v4
    v_lshlrev_b32 v1, 7, v1
    v_lshl_add_u32 v1, v2, 4, v1
    v_add_u32 v8, s29, v1
    v_xor_b32 v9, 32, v8
    v_xor_b32 v10, 64, v8
    v_xor_b32 v11, 96, v8
    v_add_u32 v4, {SS}, v8
    v_add_u32 v5, {SS}, v9
    v_add_u32 v6, {SS}, v10
    v_add_u32 v7, {SS}, v11
    s_waitcnt lgkmcnt(0)
    s_mul_i32 s60, s60, 0x9E3779B1
    s_add_u32 s60, s60, 0x7F4A7C15
    """)
    stamp(a, 1, 3)
    vm.wait(m_p1)
    stamp(a, 1); stamp(a, 1, 1); stamp(a, 2, 3)
    a(f"""
    v_mul_f32 v26, {f32(LOG2E)}, v26
    v_exp_f32 v26, v26
    v_cvt_pk_bf16_f32 v26, v26, v26
    v_lshlrev_b32 v26, 16, v26
    v_mul_f32 v20, v26, v20
    v_mul_f32 v21, v26, v21
    v_mul_f32 v20, {f32(LOG2E)}, v20
    v_mul_f32 v21, {f32(1/(2*math.pi))}, v21
    """)
    P = lambda j: 64 + 2*j
    zs = ((P(1), 8.0, 36), (44, 1.0, 38), (48, 256.0, 40))
    for (z, e, t) in zs: a(f"v_mul_f32 v{t}, {f32(e)}, v20\nv_mul_f32 v{t+1}, {f32(e)}, v21")
    for (z, e, t) in zs: a(f"v_exp_f32 v{t}, v{t}\nv_fract_f32 v{t+1}, v{t+1}")
    for (z, e, t) in zs: a(f"v_cos_f32 v{z}, v{t+1}\nv_sin_f32 v{z+1}, v{t+1}")
    for (z, e, t) in zs: a(f"v_pk_mul_f32 {vr(z,2)}, {vr(z,2)}, {vr(t,2)} op_sel:[0,0] op_sel_hi:[1,0]")
    a(f"v_mov_b32 v{P(0)}, 1.0\nv_mov_b32 v{P(0)+1}, 0")
    T = lambda i: 160 + 2*i
    Z2, Z4 = 178, 180
    Z = {256: 48, 512: 182, 768: 184, 1024: 186, 1280: 188, 1536: 190, 1792: 192}
    stamp(a, 3, 3)
    vm.wait(m_par)
    stamp(a, 4, 3)
    cmuls(a, [(P(2), P(1), P(1)), (T(0), 22, 24), (Z2, 44, 44), (Z[512], 48, 48)])
    a(f"v_pk_mul_f32 {vr(T(0),2)}, {vr(T(0),2)}, v[26:27] op_sel:[0,0] op_sel_hi:[1,0]")
    cmuls(a, [(P(3), P(1), P(2)), (P(4), P(2), P(2)), (Z4, Z2, Z2), (Z[768], Z[512], 48), (Z[1024], Z[512], Z[512]), (T(1), T(0), 44), (T(8), T(0), P(1)), (T(2), T(0), Z2)])
    cmuls(a, [(P(4+j), P(j), P(4)) for j in (1, 2, 3, 4)] + [(T(3), T(1), Z2), (Z[1280], Z[1024], 48), (Z[1536], Z[1024], Z[512]), (Z[1792], Z[1024], Z[768])])
    cmuls(a, [(P(8+j), P(j), P(8)) for j in range(1, 9)] + [(T(4+i), T(i), Z4) for i in range(4)])
    stamp(a, 5, 3)
    tmp = [28, 52]
    wn = [0]
    def wr_chunk(c, srcs, neg_im):
        n = "-" if neg_im else ""
        t = tmp[wn[0] & 1]; wn[0] += 1
        for k in range(4): a(f"v_cvt_pk_bf16_f32 v{t+k}, v{srcs[2*k]}, v{srcs[2*k+1]}")
        for k in range(4): a(f"v_cvt_pk_bf16_f32 v{t+4+k}, {n}v{srcs[2*k]+1}, {n}v{srcs[2*k+1]+1}")
        a(f"ds_write_b128 v{14+c}, {vr(t,4)}\nds_write_b128 v{14+c}, {vr(t+4,4)} offset:4096")
    wr_chunk(0, [P(j) for j in range(8)], True)
    wr_chunk(1, [P(j) for j in range(8, 16)], True)
    cmuls(a, [(P(16+j), P(j), P(16)) for j in range(1, 16)])
    wr_chunk(2, [P(j) for j in range(16, 24)], True)
    wr_chunk(3, [P(j) for j in range(24, 32)], True)
    stamp(a, 6, 3)
    cols = [0,1,2,3,4,5,6,7, 256,258,260,512, 260,262,264,768, 516,520,1024,1032, 772,776,1536,1544, 1280,1288,4,0, 1792,1800,8,0]
    loc = {i: T(i) for i in range(9)}
    jobs = []; nxt = 64
    for al in cols:
        if al not in loc:
            loc[al] = nxt; jobs.append((nxt, T(al % 256), Z[al - al % 256])); nxt += 2
    cmuls(a, jobs[:10])
    BF = 128
    stamp(a, 7, 3)
    a("s_waitcnt lgkmcnt(0)")
    stamp(a, 8, 3)
    for s in range(8):
        a(f"ds_read_b64_tr_b16 {vr(BF+4*s,2)}, v18 offset:{s*1024}\nds_read_b64_tr_b16 {vr(BF+4*s+2,2)}, v19 offset:{s*1024}")
    cmuls(a, jobs[10:])
    stamp(a, 9, 3)
    for c in range(4): wr_chunk(c, [loc[al] for al in cols[8*c:8*c+8]], False)
    AFr, D = 192, 224
    ktail = []
    for s in range(8):
        ktail.append(f"ds_read_b64_tr_b16 {vr(AFr+4*s,2)}, v18 offset:{s*1024}"); ktail.append(f"ds_read_b64_tr_b16 {vr(AFr+4*s+2,2)}, v19 offset:{s*1024}")
    F = [28, 44, 112, 160]
    AQ, AK, AV = 64, 80, 96
    def rd(g):
        f = F[g % 4]; slot = SLOT[g >> 2]; s = g & 3
        L = [f"ds_read_b128 {vr(f,4)}, v{8+s} offset:{slot*8192}" if slot < 4 else f"ds_read_b128 {vr(f,4)}, v{4+s}"]
        wr = 12 + (slot >> 1) if slot < 4 else 63
        for m in (1, 2, 0):
            o = (slot & 1)*24576 + s*6144 + m*1024
            L.append(f"ds_read_b64_tr_b16 {vr(f+4+4*m,2)}, v{wr} offset:{o}")
            L.append(f"ds_read_b64_tr_b16 {vr(f+6+4*m,2)}, v{wr} offset:{o+512}")
        return L
    def mm(g, fill):
        f = F[g % 4]
        n = (len(fill) + 2) // 3
        for k, (Dd, A_, B_) in enumerate(((AK, f+8, f), (AV, f, f+12), (AQ, f+4, f))):
            a(f"v_mfma_f32_32x32x16_bf16 {vr(Dd,16)}, {vr(A_,4)}, {vr(B_,4)}, {'0' if g == 0 else vr(Dd,16)}")
            for x in fill[k*n:(k+1)*n]: a(x)
    for x in ktail: a(x)
    stamp(a, 2); stamp(a, 2, 1); stamp(a, 12, 3)
    a("s_barrier")
    stamp(a, 3)
    for x in rd(0) + rd(1) + rd(2): a(x)
    epi = f"""v_lshlrev_b32 v1, 4, v0
    v_and_b32 v2, 0x33, v0
    v_bfe_u32 v3, v0, 2, 1
    v_lshl_add_u32 v2, v3, 3, v2
    v_bfe_u32 v3, v0, 3, 1
    v_lshl_add_u32 v2, v3, 2, v2
    v_lshlrev_b32 v2, 4, v2
    v_and_b32 v3, 0x2f, v0
    v_lshlrev_b32 v3, 4, v3
    v_bfe_u32 v4, v0, 4, 1
    v_lshl_add_u32 v3, v4, 17, v3
    s_lshl_b32 s26, s61, 1
    s_add_u32 s26, s26, s33
    s_lshl_b32 s27, s62, 1
    s_add_u32 s27, s27, s34
    s_lshl_b32 s65, s26, 8
    s_lshl_b32 s39, s27, 2
    s_add_u32 s65, s65, s39
    s_add_u32 s65, s65, {FKV}
    s_lshl_b32 s38, s26, 17
    s_lshl_b32 s39, s27, 10
    s_add_u32 s38, s38, s39
    s_add_u32 s39, s38, 65536
    s_lshl_b32 s40, s38, 1
    s_add_u32 s40, s40, {KV}
    s_add_u32 s36, s40, 131072
    s_mov_b32 s37, {f32(0.25*LOG2E)}""".split("\n")
    extra = wsetup() + epi
    issued = 3
    for g in range(32):
        ph = g & 3
        if ph == 2 and g < 30:
            a("s_waitcnt lgkmcnt(0)")
            stamp(a, 3 + (g >> 2), 1)
            a("s_barrier")
        elif ph == 3 and g < 30: pass
        else:
            a(f"s_waitcnt lgkmcnt({min(14, 7*(issued-1-g))})")
        nrd = {0: 1, 1: 0, 2: 2, 3: 1}[ph]
        fill = []
        for k in range(nrd):
            if issued < 32: fill += rd(issued); issued += 1
        if g in (5, 9, 13, 17):
            for k in range((g-5)//2, (g-5)//2 + 2):
                a(f"v_mfma_f32_32x32x16_bf16 {vr(D,16)}, {vr(AFr+4*k,4)}, {vr(BF+4*k,4)}, {'0' if k == 0 else vr(D,16)}")
        if g == 20:
            fill = fill + [f"s_xor_b32 exec_lo, s34, 1\ns_mov_b32 exec_hi, 0\nv_add_f32 v{D}, v{D}, v27\ns_mov_b64 exec, -1"] + [f"ds_write_b128 v62, {vr(D+4*q,4)} offset:{q*1024}" for q in range(4)]
        room = max(0, 12 - len(fill)) if g > 17 else 0
        ex, extra = extra[:room], extra[room:]
        mix = []
        for k in range(max(len(fill), len(ex))):
            if k < len(fill): mix.append(fill[k])
            if k < len(ex): mix.append(ex[k])
        mm(g, mix)
    assert not extra
    stamp(a, 4); stamp(a, 10, 1)
    for r in range(8): a(f"v_cvt_pk_bf16_f32 v{28+r}, v{AK+2*r}, v{AK+2*r+1}")
    a("buffer_store_dwordx4 v[28:31], v2, s[16:19], s40 offen sc1\nbuffer_store_dwordx4 v[32:35], v2, s[16:19], s36 offen sc1")
    for r in range(8): a(f"v_cvt_pk_bf16_f32 v{36+r}, v{AV+2*r}, v{AV+2*r+1}")
    a("buffer_store_dwordx4 v[36:39], v3, s[16:19], s40 offen offset:1024 sc1\nbuffer_store_dwordx4 v[40:43], v3, s[16:19], s40 offen offset:1280 sc1")
    for r in range(16): a(f"v_mul_f32 v{AQ+r}, s37, v{AQ+r}")
    for r in range(8): a(f"v_cvt_pk_bf16_f32 v{44+r}, v{AQ+2*r}, v{AQ+2*r+1}")
    a("buffer_store_dwordx4 v[44:47], v1, s[16:19], s38 offen sc1\nbuffer_store_dwordx4 v[48:51], v1, s[16:19], s39 offen sc1")
    init = f"""v_mov_b32 v24, 0xdddd
            s_mov_b32 s30, 0x0000ffff
            s_mov_b32 s31, 0x0000ffff
            v_mov_b32 v25, 0x3f803f80
            v_and_b32 v26, 0x1b, v0
            v_cmp_eq_u32 vcc, 16, v26
            v_cndmask_b32 v25, 0, v25, vcc
            s_lshl_b32 s28, s68, 16
            s_lshl_b32 s29, s67, 11
            s_add_u32 s29, s28, s29
            s_add_u32 s29, s29, {EXO}
            v_add_u32 v20, s29, v1
            s_lshl_b32 s29, s67, 13
            s_add_u32 s29, s28, s29
            s_add_u32 s29, s29, {EXO}
            v_add_u32 v21, s29, v1
            v_add_u32 v26, s28, v1
            s_lshl_b32 s29, s67, 10
            v_add_u32 v22, s29, v26
            v_xor_b32 v23, 0x10000, v22
            s_lshl_b32 s35, s64, 3
            s_lshl_b32 s29, s67, 1
            s_add_u32 s35, s35, s29
            s_lshl_b32 s48, s63, 16
            s_lshl_b32 s29, s35, 10
            s_add_u32 s48, s48, s29
            s_add_u32 s35, s35, s68
            s_lshl_b32 s28, s68, 11
            s_add_u32 s28, s28, 8192
            s_add_u32 s33, s45, s28
            s_add_u32 s50, s46, s28
            v_lshlrev_b32 v2, 5, v{VN}
            v_lshl_add_u32 v2, v{VH}, 4, v2
            s_add_u32 s47, s69, s68
            s_lshl_b32 s47, s47, 12
            s_lshl_b32 s29, s67, 10
            s_add_u32 s47, s47, s29
            s_add_u32 s47, s47, {BT}
            s_mov_b32 s12, s56
            s_mov_b32 s13, s57
            s_mov_b32 s14, 0x80000
            s_mov_b32 s15, 0x00020000
            v_lshrrev_b32 v28, 3, v0
            v_lshlrev_b32 v28, 10, v28
            v_and_b32 v29, 7, v0
            v_lshl_add_u32 v28, v29, 4, v28
            v_add_u32 v29, 7168, v28
            v_add_u32 v30, 14336, v28
            v_add_u32 v31, 21504, v28
            s_lshl_b32 s39, s3, 12
            s_add_u32 s39, s39, {SS}
            v_lshlrev_b32 v3, 9, v{VH}
            v_bfe_u32 v12, v0, 2, 2
            v_lshl_add_u32 v3, v12, 7, v3
            v_bfe_u32 v12, v0, 4, 1
            v_lshl_add_u32 v3, v12, 5, v3
            v_and_b32 v12, 3, v0
            v_lshl_add_u32 v3, v12, 3, v3
            v_add_u32 v3, s39, v3
            s_mov_b32 s70, 0
            s_lshl_b32 s41, s35, 15
            s_lshl_b32 s29, s63, 10
            s_add_u32 s41, s41, s29
            s_add_u32 s41, s41, {OF}
            s_lshl_b32 s51, s63, 1
            s_add_u32 s51, s51, s68
            v_and_b32 v12, 7, v0
            s_lshl_b32 s28, s63, 5
            v_lshl_add_u32 v13, v12, 2, s28
            s_lshl_b32 s28, s64, 7
            s_lshl_b32 s29, s67, 5
            s_add_u32 s28, s28, s29
            v_lshl_add_u32 v11, v12, 2, s28
            v_cmp_gt_u32 vcc, 16, v0
            v_cndmask_b32 v13, v11, v13, vcc
            s_lshl_b32 s28, s67, 8
            s_and_b32 s29, s63, 28
            s_add_u32 s28, s28, s29
            v_lshl_add_u32 v11, v12, 5, s28
            v_cmp_gt_u32 vcc, 32, v0
            v_cndmask_b32 v13, v11, v13, vcc
            v_add_u32 v13, {FBT}, v13""".split("\n")
    init += [f"v_mov_b32 v{r}, v25" for r in range(KB, KB+24)] + [f"v_mov_b32 v{r}, 0" for r in range(O[0], O[0]+64)]
    a("W_start:")
    a("s_waitcnt lgkmcnt(0)\ns_barrier")
    stamp(a, 6); stamp(a, 11, 1)
    a("s_cmp_ge_u32 s3, 4\ns_cbranch_scc1 W_conv\nW_init:")
    for x in init: a(x)
    a("s_cmp_ge_u32 s3, 4\ns_cbranch_scc1 W_h2\ns_waitcnt vmcnt(0)")
    flag_store(a, 65, 11, 12)
    stamp(a, 5)
    a("W_conv:")
    def cloads(st):
        b = CS[st & 3]; o = (st >> 1)*80 + (st & 1)*32; off = 8*st
        m = "\ns_ashr_i32 s36, s36, 1\ns_ashr_i32 s37, s37, 1" if st & 1 else ""
        return [f"s_mov_b64 exec, s[36:37]\nds_read_b128 {vr(b,4)}, v{VB} offset:{o}\ns_mov_b64 exec, -1\nds_read2_b32 {vr(b+4,2)}, v{VA0} offset0:{off} offset1:{off+1}",
                f"ds_read2_b32 {vr(b+6,2)}, v{VA0} offset0:{off+2} offset1:{off+3}\nds_read2_b32 {vr(b+8,2)}, v{VA1} offset0:{off} offset1:{off+1}" + m,
                f"ds_read2_b32 {vr(b+10,2)}, v{VA1} offset0:{off+2} offset1:{off+3}\nds_read_b128 {vr(b+12,4)}, v{VB} offset:{2560+o}"]
    a("s_lshl_b32 s36, -1, s44\ns_mov_b32 s37, s36")
    for st in range(3):
        for x in cloads(st): a(x)
    a(f"""
    s_lshl_b32 s28, s68, 16
    s_lshl_b32 s29, s67, 11
    s_add_u32 s29, s28, s29
    s_add_u32 s29, s29, {EXO}
    v_add_u32 v20, s29, v1
    """)
    for st in range(16):
        a(f"s_waitcnt lgkmcnt({6*min(2, 15-st)})")
        fill = cloads(st+3) if st < 13 else ["", "", ""]
        b = CS[st & 3]
        order = ((1, b+4, b), (0, b+8, b), (1, b+8, b+12))
        if st == 15: order = ((0, b+8, b), (1, b+4, b), (1, b+8, b+12))
        for k, (T, A_, B_) in enumerate(order):
            a(f"v_mfma_f32_32x32x16_bf16 {vr(CP[T],16)}, {vr(A_,4)}, {vr(B_,4)}, {'0' if st == 0 and k < 2 else vr(CP[T],16)}")
            a(fill[k])
    stamp(a, 7)
    for j in range(4):
        for h in range(2):
            a(f"ds_write_b128 v20, {vr(CP[0]+8*j+4*h,4)} offset:{j*8192+h*1024}")
    a("s_cmp_lt_u32 s3, 4\ns_cbranch_scc1 W_done\ns_setprio 0\nbuffer_load_dword v27, v19, s[16:19], 0 offen sc1\ns_branch W_init\nW_h2:")
    spin(a, 19, 27, preissued=True)
    stamp(a, 8)
    a(f"""
    s_lshl_b32 s29, s67, 10
    s_add_u32 m0, s29, {QL}
    s_add_u32 s49, s48, 1024
    buffer_load_dwordx4 v1, s[16:19], s48 offen sc1 lds
    s_add_u32 m0, s29, {QL + 65536}
    s_mov_b32 s42, s46
    buffer_load_dwordx4 v1, s[16:19], s49 offen sc1 lds
    s_mov_b32 m0, s45
    """)
    for r in range(2):
        a("buffer_load_dwordx4 v1, s[16:19], s42 offen sc1 lds\nbuffer_load_dwordx4 v1, s[16:19], s42 offen offset:2048 sc1 lds")
        if r < 1: a("s_add_u32 s42, s42, 4096\ns_add_u32 m0, m0, 4096")
    a("W_done:")
    a("s_waitcnt vmcnt(0) lgkmcnt(0)\ns_barrier")
    stamp(a, 9)
    a(f"ds_read_b128 {vr(Q[0],4)}, v22 offset:{QL}\nds_read_b128 {vr(Q[1],4)}, v23 offset:{QL}")
    def kf(i): return KB + 12*(i % 2)
    def loads(t):
        return [f"ds_read_b128 {vr(kf(t),4)}, v26 offset:{t*2048}", "s_mov_b64 exec, s[30:31]",
                f"ds_read_b128 {vr(kf(t)+4,4)}, v26 offset:{t*2048+1024}", f"ds_read_b128 {vr(kf(t)+8,4)}, v26 offset:{t*2048+1280}", "s_mov_b64 exec, -1"]
    for x in loads(0): a(x)
    for k in range(8): a(f"ds_read_b128 {vr(CB+4*k,4)}, v21 offset:{k*1024}")
    for r in range(4): a(f"v_mov_b32 v{S[1]+r}, -1")
    a(f"buffer_store_dwordx4 {vr(S[1],4)}, v1, s[16:19], s41 offen sc1")
    a("s_waitcnt lgkmcnt(10)")
    a(f"v_mfma_f32_32x32x16_bf16 {vr(S[0],16)}, {vr(kf(0),4)}, {vr(Q[0],4)}, {vr(NM[0],16)}")
    a("s_waitcnt lgkmcnt(4)")
    for r in range(8): a(f"v_add_f32 v{CB+r}, v{CB+r}, v{CB+8+r}")
    a("s_waitcnt lgkmcnt(0)")
    for r in range(8): a(f"v_add_f32 v{CB+16+r}, v{CB+16+r}, v{CB+24+r}")
    for r in range(8): a(f"v_add_f32 v{CB+r}, v{CB+r}, v{CB+16+r}")
    for r in range(4): a(f"v_cvt_pk_bf16_f32 v{CB+8+r}, v{CB+2*r}, v{CB+2*r+1}")
    a(f"buffer_store_dwordx4 {vr(CB+8,4)}, v2, s[16:19], s47 offen sc1")
    a("B_go:")
    a(f"""
    s_lshl_b32 s40, s67, 17
    s_lshl_b32 s28, s64, 7
    s_add_u32 s40, s40, s28
    s_mov_b32 s34, s50
    s_mov_b32 m0, s33
    s_nop 0
    buffer_load_dwordx4 v1, s[16:19], s34 offen sc1 lds
    s_add_u32 s34, s34, 4096
    s_add_u32 m0, m0, 4096
    """)
    a(".p2align 3")
    slots = [(t, q) for t in range(32) for q in range(2)]
    p1, p2, p3 = 2, 5, 10
    WD = (16, 26, 36, 46)
    WR = (24, 34, 44, 54)
    def hook(n):
        if n == 6:
            a("s_waitcnt vmcnt(2)\ns_barrier")
        if n == 18:
            a("s_waitcnt vmcnt(2)\ns_barrier")
            a(f"s_cmp_lg_u32 s3, 7\ns_cbranch_scc1 B_nof\ns_lshl_b32 s28, s63, 5\ns_lshl_b32 s29, s64, 2\ns_add_u32 s28, s28, s29\ns_add_u32 s28, s28, {FBT}")
            flag_store(a, 28, 22, 23)
            a("B_nof:")
        if n in WR:
            r = WR.index(n)
            a("s_waitcnt vmcnt(0)")
            for hd in range(2):
                for wc in range(2):
                    reg = WO + ((2*r+hd)*2 + wc)*4
                    a(f"ds_read_b64_tr_b16 {vr(reg,2)}, v3 offset:{hd*2048+wc*64}\nds_read_b64_tr_b16 {vr(reg+2,2)}, v3 offset:{hd*2048+1024+wc*64}")
    def hook2(n):
        if n < 4 or 6 <= n < 15:
            a("buffer_load_dwordx4 v1, s[16:19], s34 offen sc1 lds")
            a("s_add_u32 s34, s34, 4096\ns_add_u32 m0, m0, 4096" if n < 14 else "s_mov_b32 m0, s39")
        if n == 56: a("buffer_load_dword v18, v13, s[16:19], 0 offen sc1")
        for w0 in WD:
            if w0 <= n < w0 + 4:
                j = n - w0
                a(f"buffer_load_dwordx4 v{28+j}, s[12:15], s40 offen offset:{j*1024} lds")
                if j == 3: a("s_add_u32 s40, s40, 32768")
    for n, (t, q) in enumerate(slots):
        cur, nxt = S[n & 1], S[(n+1) & 1]
        e = [f"v_exp_f32 v{cur+k}, v{cur+k}" for k in range(16)]
        for x in e[0:p1]: a(x)
        if n > 0:
            tp, qp = slots[n-1]
            a(f"v_smfmac_f32_32x32x32_bf16 {vr(O[qp],16)}, {vr(kf(tp)+8,4)}, {vr(nxt+8,8)}, v24")
        if q == 0:
            hook(n)
            if t < 31:
                for x in loads(t+1): a(x)
        for x in e[p1:p2]: a(x)
        if n + 1 < len(slots):
            tn, qn = slots[n+1]
            if qn == 0: a("s_waitcnt lgkmcnt(0)")
            a(f"v_mfma_f32_32x32x16_bf16 {vr(nxt,16)}, {vr(kf(tn),4)}, {vr(Q[qn],4)}, {vr(NM[qn],16)}")
        for x in e[p2:p3]: a(x)
        a(f"v_smfmac_f32_32x32x32_bf16 {vr(O[q],16)}, {vr(kf(t)+4,4)}, {vr(cur,8)}, v24")
        hook2(n)
        for x in e[p3:16]: a(x)
    a(f"v_smfmac_f32_32x32x32_bf16 {vr(O[1],16)}, {vr(kf(31)+8,4)}, {vr(S[1]+8,8)}, v24")
    stamp(a, 10)
    a(f"""
    v_add_u32 v12, s39, v1
    v_xor_b32 v17, 16384, v12
    v_mov_b32 v14, 0
    s_mov_b32 s28, {f32(2.0**60)}
    s_mov_b32 s29, {f32(2.0**-30)}
    """)
    for r in range(8): a(f"v_fma_f32 v14, v{O[0]+r}, 0, v14")
    a(f"v_cmp_nge_f32 s[42:43], s28, v{O[0]+8}\nv_cmp_nle_f32 s[44:45], s29, v{O[0]+8}")
    for k in range(3): a(f"ds_write_b128 v12, {vr(O[1]+4*k,4)} offset:{k*1024}")
    for r in range(8): a(f"v_fma_f32 v14, v{O[1]+r}, 0, v14")
    a(f"""
    v_cmp_nge_f32 s[46:47], s28, v{O[1]+8}
    v_cmp_nle_f32 s[48:49], s29, v{O[1]+8}
    v_cmp_u_f32 vcc, v14, v14
    s_or_b64 s[42:43], s[42:43], s[44:45]
    s_or_b64 s[46:47], s[46:47], s[48:49]
    s_or_b64 vcc, vcc, s[42:43]
    s_or_b64 vcc, vcc, s[46:47]
    s_cselect_b32 s28, 1, 0
    v_mov_b32 v14, s28
    ds_write_b32 v12, v14 offset:3072
    v_and_b32 v15, 7, v0
    v_lshlrev_b32 v16, 12, v15
    v_add_u32 v16, {SS}, v16
    s_mov_b32 s42, s51               ; ttile
    s_waitcnt lgkmcnt(0)
    s_barrier
    ds_read_b32 v14, v16 offset:3072
    """)
    for k in range(3): a(f"ds_read_b128 {vr(S[0]+4*k,4)}, v17 offset:{k*1024}")
    a(f"""
    s_waitcnt lgkmcnt(0)
    v_cmp_ne_u32 vcc, 0, v14
    v_add_f32 v{O[0]+8}, v{O[0]+8}, v{S[0]+8}
    v_rcp_f32 v14, v{O[0]+8}
    s_cmp_lg_u32 s70, 0
    s_cselect_b64 vcc, 0, vcc
    s_cbranch_vccnz B_fallback
    """)
    for r in range(8): a(f"v_add_f32 v{O[0]+r}, v{O[0]+r}, v{S[0]+r}")
    for r in range(8): a(f"v_mul_f32 v{O[0]+r}, v{O[0]+r}, v14")
    for r in range(4): a(f"v_cvt_pk_bf16_f32 v{S[1]+r}, v{O[0]+2*r}, v{O[0]+2*r+1}")
    for r in range(4): a(f"v_min_u32 v{S[1]+r}, -2, v{S[1]+r}")
    a("s_waitcnt vmcnt(0)")
    a(f"buffer_store_dwordx4 {vr(S[1],4)}, v1, s[16:19], s41 offen sc1")
    stamp(a, 11)
    OFr, ACC, E, RD, ID, BFr = 128, [32, 48], 64, 80, 112, 120
    a(f"""
    v_cmp_ne_u32 vcc, s60, v18
    s_cbranch_vccz C_pre
    """)
    spin(a, 13, 18)
    a(f"""
    C_pre:
    s_lshl_b32 s43, s42, 15
    s_lshl_b32 s29, s67, 13
    s_add_u32 s43, s43, s29
    s_add_u32 s43, s43, {OF}
    s_add_u32 s66, s43, 4096
    """)
    a(f"""
    v_and_b32 v2, 31, v0
    v_lshrrev_b32 v3, 5, v0
    v_lshlrev_b32 v6, 2, v2
    s_lshl_b32 s28, s42, 7
    s_add_u32 s28, s28, {GG}
    buffer_load_dword v7, v6, s[16:19], s28 offen sc1
    v_and_b32 v6, 15, v0
    v_lshlrev_b32 v6, 12, v6
    v_lshl_add_u32 v6, v3, 4, v6
    s_lshl_b32 s28, s64, 18
    s_lshl_b32 s29, s67, 16
    s_add_u32 s28, s28, s29
    s_and_b32 s29, s42, 31
    s_lshl_b32 s29, s29, 5
    s_add_u32 s28, s28, s29
    s_lshr_b32 s29, s42, 5
    s_lshl_b32 s29, s29, 11
    s_add_u32 s28, s28, s29
    s_add_u32 s28, s28, {BT}
    buffer_load_dwordx4 {vr(BFr,4)}, v6, s[16:19], s28 offen sc1
    buffer_load_dwordx4 {vr(BFr+4,4)}, v6, s[16:19], s28 offen offset:1024 sc1
    v_lshrrev_b32 v9, 3, v2
    v_bfe_u32 v10, v2, 1, 1
    v_lshl_add_u32 v9, v9, 1, v10
    v_bfe_u32 v10, v2, 2, 1
    v_xor_b32 v10, v10, v3
    v_lshl_add_u32 v9, v10, 4, v9
    v_and_b32 v10, 1, v2
    v_lshlrev_b32 v10, 4, v10
    v_mov_b32 v11, 0x3f80
    v_lshlrev_b32 v11, v10, v11
    """)
    for k in range(8): a(f"v_cmp_eq_u32 vcc, {k}, v9\nv_cndmask_b32 v{ID+k}, 0, v11, vcc")
    a(f"""
    s_lshl_b32 s28, s68, 16
    s_lshl_b32 s29, s67, 11
    s_add_u32 s28, s28, s29
    v_add_u32 v17, s28, v1
    s_lshl_b32 s28, s68, 16
    s_lshl_b32 s29, s67, 13
    s_add_u32 s28, s28, s29
    v_add_u32 v18, s28, v1
    v_lshlrev_b32 v9, 10, v2
    v_lshl_add_u32 v9, v3, 4, v9
    s_lshl_b32 s69, s42, 15
    s_lshl_b32 s29, s64, 7
    s_add_u32 s69, s69, s29
    s_lshl_b32 s29, s67, 5
    s_add_u32 s69, s69, s29
    s_mov_b32 s71, {SPIN}
    """)
    srd(a, 20, 54, 2097152)
    if OPT.get("light", 0):
        a(f"""
        v_and_b32 v4, 7, v0
        v_lshlrev_b32 v4, 10, v4
        C_light:
        buffer_load_dword v5, v4, s[16:19], s43 offen offset:1020 sc1
        s_waitcnt vmcnt(0)
        v_cmp_eq_u32 vcc, -1, v5
        s_and_b32 s28, vcc_lo, 0xff
        s_bcnt1_i32_b32 s28, s28
        s_sub_u32 s71, s71, 1
        s_cselect_b32 s28, 0, s28
        s_cmp_ge_u32 s28, {OPT["light"]}
        s_cbranch_scc1 C_light
        """)
    for i in range(8):
        a(f"buffer_load_dwordx4 {vr(OFr+4*i,4)}, v1, s[16:19], s{43 if i < 4 else 66} offen offset:{(i%4)*1024} sc1")
    a("s_waitcnt vmcnt(8)")
    a(f"v_mfma_f32_32x32x16_bf16 {vr(E,16)}, {vr(BFr,4)}, {vr(ID,4)}, 0")
    a(f"v_mfma_f32_32x32x16_bf16 {vr(E,16)}, {vr(BFr+4,4)}, {vr(ID+4,4)}, {vr(E,16)}")
    a("s_waitcnt vmcnt(0)")
    PM = [24, 26, 28, 30, 32, 34, 36, 38]
    a("s_branch C_chk\nC_retry:")
    for i in range(8):
        a(f"s_mov_b64 exec, s[{PM[i]}:{PM[i]+1}]\nbuffer_load_dwordx4 {vr(OFr+4*i,4)}, v1, s[16:19], s{43 if i < 4 else 66} offen offset:{(i%4)*1024} sc1")
    a("s_mov_b64 exec, -1\ns_waitcnt vmcnt(0)\nC_chk:")
    for i in range(8): a(f"v_max3_u32 v{RD+i}, v{OFr+4*i}, v{OFr+4*i+1}, v{OFr+4*i+2}")
    for i in range(8): a(f"v_max_u32 v{RD+i}, v{RD+i}, v{OFr+4*i+3}")
    for i in range(8): a(f"v_cmp_eq_u32 s[{PM[i]}:{PM[i]+1}], -1, v{RD+i}")
    a(f"""
    s_or_b64 s[44:45], s[24:25], s[26:27]
    s_or_b64 s[46:47], s[28:29], s[30:31]
    s_or_b64 s[48:49], s[32:33], s[34:35]
    s_or_b64 s[50:51], s[36:37], s[38:39]
    s_or_b64 s[44:45], s[44:45], s[46:47]
    s_or_b64 s[48:49], s[48:49], s[50:51]
    s_or_b64 vcc, s[44:45], s[48:49]
    s_sub_u32 s71, s71, 1
    s_cselect_b64 vcc, 0, vcc
    s_cbranch_vccnz C_retry
    """)
    stamp(a, 12)
    fill = ["v_sub_f32 v8, 1.0, v7", "v_cvt_pk_bf16_f32 v8, v8, v8", "v_lshlrev_b32 v8, 16, v8"] + [f"v_mul_f32 v{E+r}, v{E+r}, v8" for r in range(8)]
    for wc in range(2):
        for i in range(8):
            a(f"v_mfma_f32_32x32x16_bf16 {vr(ACC[wc],16)}, {vr(WO+(2*i+wc)*4,4)}, {vr(OFr+4*i,4)}, {'0' if i == 0 else vr(ACC[wc],16)}")
            if wc == 0:
                for x in fill[:2]: a(x)
                fill = fill[2:]
            elif i >= 4:
                j, h = (i - 4) >> 1, (i - 4) & 1
                a(f"ds_write_b128 v17, {vr(ACC[0]+8*j+4*h,4)} offset:{j*8192+h*1024}")
    for j in range(2, 4):
        for h in range(2):
            a(f"ds_write_b128 v17, {vr(ACC[0]+8*j+4*h,4)} offset:{j*8192+h*1024}")
    a("s_waitcnt lgkmcnt(0)\ns_barrier")
    for k in range(8): a(f"ds_read_b128 {vr(RD+4*k,4)}, v18 offset:{k*1024}")
    a("s_waitcnt lgkmcnt(4)")
    for r in range(8): a(f"v_add_f32 v{RD+r}, v{RD+r}, v{RD+8+r}")
    a("s_waitcnt lgkmcnt(0)")
    for r in range(8): a(f"v_add_f32 v{RD+16+r}, v{RD+16+r}, v{RD+24+r}")
    for r in range(8): a(f"v_add_f32 v{RD+r}, v{RD+r}, v{RD+16+r}")
    for r in range(8): a(f"v_fma_f32 v{RD+r}, v{RD+r}, v7, v{E+r}")
    for r in range(4): a(f"v_cvt_pk_bf16_f32 v{12+r}, v{RD+2*r}, v{RD+2*r+1}")
    a(f"""
    v_permlane32_swap_b32 v12, v14
    v_permlane32_swap_b32 v13, v15
    buffer_store_dwordx4 v[12:15], v9, s[20:23], s69 offen
    s_or_b32 s28, s2, s3
    s_cmp_lg_u32 s28, 0
    s_cbranch_scc1 L_fin
    s_mov_b32 s28, {FL}
    """)
    flag_store(a, 28, 6, 7)
    a("L_fin:")
    if OPT.get("padto"):
        a(f"L_pad:\ns_memrealtime s[4:5]\ns_waitcnt lgkmcnt(0)\ns_sub_u32 s4, s4, s72\ns_cmp_lt_u32 s4, {OPT['padto']*100}\ns_cbranch_scc1 L_pad")
    stamp_flush(a)
    a("L_end:\ns_endpgm")
    a(f"""
    B_fallback:
    s_barrier
    s_mov_b32 s70, 1
    s_mov_b32 s28, 64
    v_mov_b32 v12, v1
    v_mov_b32 v16, 0xff800000
    v_mov_b32 v17, 0xff800000
    B_maxloop:
    ds_read_b128 {vr(KB,4)}, v12
    v_add_u32 v12, 2048, v12
    s_waitcnt lgkmcnt(0)
    v_mfma_f32_32x32x16_bf16 {vr(S[0],16)}, {vr(KB,4)}, {vr(Q[0],4)}, 0
    v_mfma_f32_32x32x16_bf16 {vr(S[1],16)}, {vr(KB,4)}, {vr(Q[1],4)}, 0
    s_sub_u32 s28, s28, 1
    s_cmp_lg_u32 s28, 0
    """)
    for q in range(2):
        for k in range(8): a(f"v_max3_f32 v{16+q}, v{16+q}, v{S[q]+2*k}, v{S[q]+2*k+1}")
    a("s_cbranch_scc1 B_maxloop")
    for q in range(2):
        a(f"v_mov_b32 v15, v{16+q}\nv_permlane32_swap_b32 v{16+q}, v15\nv_max_f32 v15, v{16+q}, v15\nv_sub_f32 v15, 0, v15")
        for r in range(16): a(f"v_mov_b32 v{NM[q]+r}, v15")
    for r in range(O[0], O[0]+32): a(f"v_mov_b32 v{r}, 0")
    for x in loads(0): a(x)
    a("s_waitcnt lgkmcnt(0)")
    a(f"v_mfma_f32_32x32x16_bf16 {vr(S[0],16)}, {vr(kf(0),4)}, {vr(Q[0],4)}, {vr(NM[0],16)}")
    a("s_nop 7\ns_branch B_go\nL_codeend:")

def main(out):
    a = Asm()
    build(a)
    for b in a.check_branches(): print("BRANCH HAZARD:", b)
    K = NAME + "_kernel"
    head = f"; generated by work/gen/gen3.py\n; @launch grid=(256,1,1) block=(512,1,1) lds=163840\n" + '.amdgcn_target "amdgcn-amd-amdhsa--gfx950"\n.text\n'
    tail = f'''.section .rodata,"a"
.p2align 6
.amdhsa_kernel {K}
  .amdhsa_next_free_vgpr 256
  .amdhsa_next_free_sgpr {102 if STAMP else 72}
  .amdhsa_accum_offset 256
  .amdhsa_group_segment_fixed_size 0
  .amdhsa_kernarg_size 128
  .amdhsa_user_sgpr_count 2
  .amdhsa_user_sgpr_kernarg_segment_ptr 1
  .amdhsa_system_sgpr_workgroup_id_x 1
.end_amdhsa_kernel
'''
    open(out, "w").write(head + a.text() + tail)

if __name__ == "__main__":
    if "--stamp" in sys.argv:
        STAMP = True; sys.argv.remove("--stamp")
    for x in list(sys.argv):
        if x.startswith("-D"):
            k, _, v = x[2:].partition("="); OPT[k] = int(v) if v else 1; sys.argv.remove(x)
    main(sys.argv[1] if len(sys.argv) > 1 else f"cdna_kernels/{NAME}.s")
```
